```python
import torch

def _softmax(x, axis=-1):
    return torch.softmax(x, dim=axis)
def _gelu(x):
    return torch.nn.functional.gelu(x, approximate="tanh")
def _silu(x):
    return torch.nn.functional.silu(x)
def _sigmoid(x):
    return torch.sigmoid(x)
def _layernorm(x, axis=-1, eps=1e-5):
    m = x.mean(dim=axis, keepdim=True)
    v = x.var(dim=axis, keepdim=True, unbiased=False)
    return (x - m) / torch.sqrt(v + eps)
def _scatter_add(tgt, idx, src, axis=0):
    return tgt.clone().index_add_(axis, idx, src)
def _segment_sum(src, seg, n):
    out = torch.zeros((n,) + src.shape[1:], dtype=src.dtype)
    return out.index_add_(0, seg, src)
def _pad(x, pw):
    flat = tuple(v for pair in reversed(pw) for v in pair)
    return torch.nn.functional.pad(x, flat)

kernel_name = 'parallel_sum__ssm_conv_s5__swiglu_ffn__prompt'

def setup_inputs():

    _w = (lambda a: (lambda t: t.to(torch.bfloat16) if t.is_floating_point() else t)(torch.as_tensor(a)))
    def _A_setup():
        B, S, D = 1, 2048, 1024
        P = D
        Lambda_re = -0.5 * (lambda _x: torch.exp(torch.as_tensor(_x)))((lambda *s: torch.randn(*s, dtype=torch.bfloat16) * 0.8)(P))
        Lambda_im = (lambda *s: torch.randn(*s, dtype=torch.bfloat16) * 0.8)(P) * 1.0
        B_re = (lambda *s: torch.randn(*s, dtype=torch.bfloat16) * 1.6)(P, D) * (D ** -0.5)
        B_im = (lambda *s: torch.randn(*s, dtype=torch.bfloat16) * 1.6)(P, D) * (D ** -0.5)
        C_re = (lambda *s: torch.randn(*s, dtype=torch.bfloat16) * 1.6)(D, P) * (P ** -0.5)
        C_im = (lambda *s: torch.randn(*s, dtype=torch.bfloat16) * 1.6)(D, P) * (P ** -0.5)
        log_dt = (lambda *s: torch.randn(*s, dtype=torch.bfloat16) * 0.8)(P) * 0.3 - 2.0
        Dskip = (lambda *s: torch.randn(*s, dtype=torch.bfloat16) * 0.4)(D)
        return {
            "x": _w((lambda *s: torch.randn(*s, dtype=torch.bfloat16) * 0.05)(B, S, D)),
            "Lambda_re": _w(Lambda_re),
            "Lambda_im": _w(Lambda_im),
            "B_re": _w(B_re),
            "B_im": _w(B_im),
            "C_re": _w(C_re),
            "C_im": _w(C_im),
            "log_dt": _w(log_dt),
            "Dskip": _w(Dskip),
        }
    _A_in = _A_setup()

    def _B_setup():
        B, S, D, F = 1, 2048, 1024, 3584
        return {
            "x": _w((lambda *s: torch.randn(*s, dtype=torch.bfloat16) * 0.05)(B, S, D)),
            "w_gate": _w((lambda *s: torch.randn(*s, dtype=torch.bfloat16) * 0.05)(D, F)),
            "w_up": _w((lambda *s: torch.randn(*s, dtype=torch.bfloat16) * 0.05)(D, F)),
            "w_down": _w((lambda *s: torch.randn(*s, dtype=torch.bfloat16) * 0.05)(F, D)),
        }
    _B_in = _B_setup()

    return {
        "A_x": _A_in["x"],
        "A_Lambda_re": _A_in["Lambda_re"],
        "A_Lambda_im": _A_in["Lambda_im"],
        "A_B_re": _A_in["B_re"],
        "A_B_im": _A_in["B_im"],
        "A_C_re": _A_in["C_re"],
        "A_C_im": _A_in["C_im"],
        "A_log_dt": _A_in["log_dt"],
        "A_Dskip": _A_in["Dskip"],
        "B_x": _B_in["x"],
        "B_w_gate": _B_in["w_gate"],
        "B_w_up": _B_in["w_up"],
        "B_w_down": _B_in["w_down"],
    }

def reference(A_x, A_Lambda_re, A_Lambda_im, A_B_re, A_B_im, A_C_re, A_C_im, A_log_dt, A_Dskip, B_x, B_w_gate, B_w_up, B_w_down):
    def _A_ref(x, Lambda_re, Lambda_im, B_re, B_im, C_re, C_im, log_dt, Dskip):
        Bsz, L, H = x.shape
        Lam = Lambda_re + 1j * Lambda_im
        Bmat = B_re + 1j * B_im
        Cmat = C_re + 1j * C_im
        dt = torch.exp(log_dt)
        Lam_bar = torch.exp(dt * Lam)
        B_bar = ((Lam_bar - 1.0) / Lam)[:, None] * Bmat
        Bu = torch.einsum("bld,pd->blp", x + 0j, B_bar)
        h = torch.zeros_like(Bu[:, 0, :])
        hs = []
        for t in range(L):
            h = Lam_bar[None, :] * h + Bu[:, t, :]
            hs.append(h)
        hseq = torch.stack(hs, 1)
        y = 2.0 * torch.einsum("blp,dp->bld", hseq, Cmat).real + x * Dskip[None, None, :]
        return y

    def _B_ref(x, w_gate, w_up, w_down):
        g = _silu(x @ w_gate)
        u = x @ w_up
        return (g * u) @ w_down

    x = A_x
    xn = _layernorm(x, axis=-1)
    return x + _A_ref(xn, A_Lambda_re, A_Lambda_im, A_B_re, A_B_im, A_C_re, A_C_im, A_log_dt, A_Dskip) + _B_ref(xn, B_w_gate, B_w_up, B_w_down)
```

```python
class Asm:
    def __init__(self):
        self.lines = []
    def __call__(self, s):
        for l in s.split('\n'):
            l = l.strip()
            if l:
                self.lines.append(l if l.endswith(':') or l.startswith('.') else '    ' + l)
    def text(self):
        return '\n'.join(self.lines) + '\n'

def kernel_head(a, name):
    a(f'.text\n.globl {name}\n.p2align 8\n.type {name},@function\n{name}:')

def kernel_desc(name, vgpr, accum, sgpr=102):
    return (f'.section .rodata,"a"\n.p2align 6\n.amdhsa_kernel {name}\n'
            f'  .amdhsa_next_free_vgpr {vgpr}\n  .amdhsa_next_free_sgpr {sgpr}\n'
            f'  .amdhsa_accum_offset {accum}\n  .amdhsa_group_segment_fixed_size 0\n'
            f'  .amdhsa_kernarg_size 128\n  .amdhsa_user_sgpr_count 2\n'
            f'  .amdhsa_user_sgpr_kernarg_segment_ptr 1\n  .amdhsa_system_sgpr_workgroup_id_x 1\n'
            f'  .amdhsa_float_denorm_mode_32 3\n'
            f'.end_amdhsa_kernel\n')

def vr(b, n=1, p='v'):
    return f'{p}{b}' if n == 1 else f'{p}[{b}:{b+n-1}]'
def ar(b, n=1):
    return vr(b, n, 'a')
def sr(b, n=1):
    return vr(b, n, 's')

class Stream:
    def __init__(self, lds_age=3, vm_age=10**9):
        self.out = []
        self.issued = {'lds': [], 'vm': []}
        self.index = {}
        self.covered = {'lds': 0, 'vm': 0}
        self.age = {'lds': lds_age, 'vm': vm_age}
        self.clock = 0
    def raw(self, text):
        for l in text.split('\n'):
            l = l.strip()
            if l:
                self.out.append(l)
    def need(self, tags):
        w = {}
        for t in tags:
            cls, idx = self.index[t]
            if idx >= self.covered[cls]:
                w[cls] = max(w.get(cls, -1), idx)
        parts = []
        for cls, idx in w.items():
            lst = self.issued[cls]
            while idx + 1 < len(lst) and self.clock - lst[idx + 1][1] >= self.age[cls]:
                idx += 1
            cap = 15 if cls == 'lds' else 63
            n = len(lst) - 1 - idx
            if n > cap:
                n = cap; idx = len(lst) - 1 - cap
            self.covered[cls] = idx + 1
            parts.append(('lgkmcnt(%d)' if cls == 'lds' else 'vmcnt(%d)') % n)
        if parts:
            self.out.append('s_waitcnt ' + ' '.join(sorted(parts, reverse=True)))
    def mem(self, cls, text, tag=None):
        lst = self.issued[cls]
        if tag is not None:
            self.index[tag] = (cls, len(lst))
        lst.append((tag, self.clock))
        self.out.append(text)
    def drain(self, cls):
        self.covered[cls] = len(self.issued[cls])
        self.out.append('s_waitcnt ' + ('lgkmcnt(0)' if cls == 'lds' else 'vmcnt(0)'))
    def mfma(self, text, needs=()):
        self.need(needs)
        self.out.append(text)
        self.clock += 1
    def mark(self):
        return len(self.out)

import re
def merge_bodies(bodies):
    def split(b):
        res = []; pend = {}
        for l in b:
            if l.startswith('s_waitcnt'):
                for k, v in re.findall(r'(\w+)\((\d+)\)', l):
                    pend[k] = min(pend.get(k, 99), int(v))
            else:
                res.append((pend, l)); pend = {}
        assert not pend
        return res
    sp = [split(b) for b in bodies]
    assert all([l for _, l in x] == [l for _, l in sp[0]] for x in sp), 'steady state mismatch'
    out = []
    for items in zip(*sp):
        w = {}
        for p, _ in items:
            for k, v in p.items():
                w[k] = min(w.get(k, 99), v)
        if w:
            out.append('s_waitcnt ' + ' '.join(f'{k}({v})' for k, v in sorted(w.items(), reverse=True)))
        out.append(items[0][1])
    return out
```

```python
import sys
from asmgen import *

XN_OFF = 0
H_OFF = 4 << 20
HQ = 44 * 4096
AGG_OFF = 28 << 20
FLG_OFF = AGG_OFF + 65536
PART_OFF = 32 << 20
T_OFF = 64 << 20
WS_BYTES = 0x10000000
SPIN_MAX = 200000
MFMA = 'v_mfma_f32_16x16x32_bf16'

def tok_of(a, rho):
    return 16 * (rho >> 2) + 4 * a + (rho & 3)

class Stamps:
    def __init__(self, on, kidx):
        self.on = on; self.n = 0; self.kidx = kidx
    def __call__(self):
        if not self.on: return ''
        i = self.n; self.n += 1
        assert i < 7
        return f's_memtime s[{74+2*i}:{75+2*i}]'
    def start(self):
        return 's_memrealtime s[70:71]\n' + self() if self.on else ''
    def finish(self, wave, nw):
        if not self.on: return ''
        s = 's_waitcnt vmcnt(0)\n' + self() + '\ns_memrealtime s[72:73]\ns_waitcnt lgkmcnt(0)\n'
        s += 'v_mov_b32 v2, s70\nv_mov_b32 v3, s72\n'
        for i in range(1, 7):
            s += (f's_sub_u32 s{74+2*i}, s{74+2*i}, s74\nv_mov_b32 v{3+i}, s{74+2*i}\n' if i < self.n else f'v_mov_b32 v{3+i}, 0\n')
        s += (f's_mul_i32 s70, s2, {nw}\ns_add_u32 s70, s70, {wave}\ns_lshl_b32 s70, s70, 5\n'
              f's_add_u32 s70, s70, {T_OFF + self.kidx * 65536}\nv_mov_b32 v10, s70\n'
              'buffer_store_dwordx4 v[2:5], v10, s[4:7], 0 offen\nbuffer_store_dwordx4 v[6:9], v10, s[4:7], 0 offen offset:16\n')
        return s

def gen_ln(a, stamp=False, pf1=0, **kw):
    sp = Stamps(stamp, 0)
    kernel_head(a, 'ln_kernel')
    a(f'''
    s_cmp_ge_u32 s2, 256
    s_cbranch_scc1 L_ln_done
    {sp.start()}
    s_load_dwordx2 s[8:9], s[0:1], 0
    s_load_dwordx2 s[4:5], s[0:1], 120
    s_load_dwordx4 s[20:23], s[0:1], 80
    s_load_dwordx4 s[24:27], s[0:1], 24
    v_lshrrev_b32 v1, 6, v0
    v_lshlrev_b32 v34, 2, v0
    v_mov_b32 v36, v0
    v_and_b32 v0, 63, v0
    v_readfirstlane_b32 s3, v1
    s_and_b32 s12, s2, 7
    s_lshl_b32 s12, s12, 3
    s_add_u32 s12, s12, s3
    s_lshr_b32 s13, s2, 3
    s_and_b32 s14, s12, 3
    s_bfe_u32 s15, s12, 0x20002
    s_lshl_b32 s15, s15, 4
    s_add_u32 s14, s14, s15
    s_lshr_b32 s15, s12, 4
    s_lshl_b32 s16, s15, 2
    s_add_u32 s14, s14, s16
    s_lshl_b32 s15, s15, 10
    s_and_b32 s16, s12, 15
    v_lshrrev_b32 v2, 2, v0
    v_lshlrev_b32 v2, 12, v2
    v_and_b32 v3, 3, v0
    v_lshlrev_b32 v3, 8, v3
    v_add_u32 v2, v2, v3
    s_lshl_b32 s16, s16, 4
    s_add_u32 s15, s15, s16
    s_lshl_b32 s16, s13, 17
    s_add_u32 s15, s15, s16
    s_add_u32 s15, s15, {XN_OFF}
    s_add_u32 s17, s15, 65536
    s_lshl_b32 s13, s13, 6
    s_add_u32 s13, s13, s14
    s_lshl_b32 s13, s13, 11
    v_lshlrev_b32 v1, 4, v0
    s_mov_b32 s10, {2048*1024*2}
    s_mov_b32 s11, 0x20000
    s_mov_b32 s6, {WS_BYTES}
    s_mov_b32 s7, 0x20000
    s_lshl_b32 s18, s2, 9
    s_add_u32 s18, s18, {AGG_OFF}
    v_mov_b32 v35, -1
    s_waitcnt lgkmcnt(0)
    buffer_load_dwordx4 v[4:7], v1, s[8:11], s13 offen
    buffer_load_dwordx4 v[8:11], v1, s[8:11], s13 offen offset:1024
    ''')
    npf = 0
    if pf1:
        a(f'''
        s_lshl_b32 s19, s2, 9
        v_add_u32 v36, s19, v36
        v_mul_u32_u24 v36, {pf1}, v36
        s_mov_b32 s28, s20
        s_mov_b32 s29, s21
        s_mov_b32 s30, {1024*3584*2}
        s_mov_b32 s31, 0x20000
        s_mov_b32 s32, s22
        s_mov_b32 s33, s23
        s_mov_b32 s34, {1024*3584*2}
        s_mov_b32 s35, 0x20000
        s_mov_b32 s36, s24
        s_mov_b32 s37, s25
        s_mov_b32 s38, {1024*1024*2}
        s_mov_b32 s39, 0x20000
        s_mov_b32 s40, s26
        s_mov_b32 s41, s27
        s_mov_b32 s42, {1024*1024*2}
        s_mov_b32 s43, 0x20000
        ''')
        for srd in (28, 32, 36, 40):
            a(f'buffer_load_dword v37, v36, s[{srd}:{srd+3}], 0 offen'); npf += 1
    a(f'''
    s_cmp_ge_u32 s3, 2
    s_cbranch_scc1 L_ln_noclr
    buffer_store_dword v35, v34, s[4:7], s18 offen
    s_waitcnt vmcnt({npf + 1})
    s_branch L_ln_go
    L_ln_noclr:
    s_waitcnt vmcnt({npf})
    L_ln_go:
    {sp()}
    ''')
    for i in range(8):
        a(f'v_lshlrev_b32 v{16+2*i}, 16, v{4+i}\nv_and_b32 v{17+2*i}, 0xffff0000, v{4+i}')
    def wave_sum(v, t):
        a(f'''
        s_nop 1
        v_add_f32_dpp v{v}, v{v}, v{v} quad_perm:[1,0,3,2] row_mask:0xf bank_mask:0xf
        s_nop 1
        v_add_f32_dpp v{v}, v{v}, v{v} quad_perm:[2,3,0,1] row_mask:0xf bank_mask:0xf
        s_nop 1
        v_add_f32_dpp v{v}, v{v}, v{v} row_ror:4 row_mask:0xf bank_mask:0xf
        s_nop 1
        v_add_f32_dpp v{v}, v{v}, v{v} row_ror:8 row_mask:0xf bank_mask:0xf
        v_mov_b32 v{t}, v{v}
        s_nop 1
        v_permlane16_swap_b32 v{v}, v{t}
        v_add_f32 v{v}, v{v}, v{t}
        v_mov_b32 v{t}, v{v}
        s_nop 1
        v_permlane32_swap_b32 v{v}, v{t}
        v_add_f32 v{v}, v{v}, v{t}
        ''')
    a('v_pk_add_f32 v[12:13], v[16:17], v[18:19]\nv_pk_add_f32 v[14:15], v[20:21], v[22:23]')
    a('v_pk_add_f32 v[4:5], v[24:25], v[26:27]\nv_pk_add_f32 v[6:7], v[28:29], v[30:31]')
    a('v_pk_add_f32 v[12:13], v[12:13], v[14:15]\nv_pk_add_f32 v[4:5], v[4:5], v[6:7]')
    a('v_pk_add_f32 v[12:13], v[12:13], v[4:5]\nv_add_f32 v12, v12, v13')
    wave_sum(12, 13)
    a('v_mul_f32 v12, 0x3a800000, v12')
    a('v_sub_f32 v4, v16, v12\nv_mul_f32 v14, v4, v4\nv_sub_f32 v5, v17, v12\nv_mul_f32 v15, v5, v5')
    for i in range(2, 16):
        a(f'v_sub_f32 v{4+i%2}, v{16+i}, v12\nv_fmac_f32 v{14+i%2}, v{4+i%2}, v{4+i%2}')
    a('v_add_f32 v14, v14, v15')
    wave_sum(14, 15)
    a('''
    v_mul_f32 v14, 0x3a800000, v14
    v_cvt_pk_bf16_f32 v12, v12, v14
    v_and_b32 v14, 0xffff0000, v12
    v_lshlrev_b32 v12, 16, v12
    v_add_f32 v14, 0x3727c5ac, v14
    v_cvt_pk_bf16_f32 v14, v14, v14
    v_lshlrev_b32 v14, 16, v14
    v_sqrt_f32 v14, v14
    s_nop 0
    v_cvt_pk_bf16_f32 v14, v14, v14
    v_lshlrev_b32 v14, 16, v14
    v_rcp_f32 v15, v14
    ''')
    for i in range(8):
        lo, hi = 16 + 2 * i, 17 + 2 * i
        a(f'''
        v_sub_f32 v{lo}, v{lo}, v12
        v_sub_f32 v{hi}, v{hi}, v12
        v_cvt_pk_bf16_f32 v{hi}, v{lo}, v{hi}
        v_lshlrev_b32 v{lo}, 16, v{hi}
        v_and_b32 v{hi}, 0xffff0000, v{hi}
        v_mul_f32 v32, v{lo}, v15
        v_mul_f32 v33, v{hi}, v15
        v_fma_f32 v{lo}, -v32, v14, v{lo}
        v_fma_f32 v{hi}, -v33, v14, v{hi}
        v_fmac_f32 v32, v{lo}, v15
        v_fmac_f32 v33, v{hi}, v15
        v_cvt_pk_bf16_f32 v{4+i}, v32, v33
        ''')
    a(f'''
    buffer_store_dwordx4 v[4:7], v2, s[4:7], s15 offen
    buffer_store_dwordx4 v[8:11], v2, s[4:7], s17 offen
    {sp()}
    {sp.finish('s3', 8)}
    L_ln_done:
    s_endpgm
    ''')
    return kernel_desc('ln_kernel', 40, 40, 96)

def p2(r): return f'v[{r}:{r+1}]'
def cfma(d, x, y, c, t=None):
    t = d if t is None else t
    first = (f'v_pk_fma_f32 {p2(t)}, {p2(x)}, {p2(y)}, {p2(c)} op_sel_hi:[0,1,1]' if c is not None
             else f'v_pk_mul_f32 {p2(t)}, {p2(x)}, {p2(y)} op_sel_hi:[0,1]')
    return [first, f'v_pk_fma_f32 {p2(d)}, {p2(x)}, {p2(y)}, {p2(t)} op_sel:[1,1,0] op_sel_hi:[1,0,1] neg_lo:[1,0,0]']
def ilv(*seqs):
    out = []
    for i in range(max(len(s) for s in seqs)):
        for s in seqs:
            if i < len(s): out.append(s[i])
    return out

STG = 37120
UP_OFF = 14464
SSM_OFF = 28928
WX_OFF = 4 * STG
G1_LDS = WX_OFF + 1024

def gen_g1(a, xm=8, stamp=False, roll=True, vm_slots=None, lds_age=3, ring=6, hst='sc1', pf2=0, mimic=False, **kw):
    sp = Stamps(stamp, 1)
    kernel_head(a, 'g1_kernel')
    NST = 16
    if xm == 8:
        mp = 's_lshr_b32 s30, s29, 2\ns_and_b32 s31, s29, 3\ns_lshl_b32 s28, s28, 2\ns_add_u32 s31, s31, s28'
    else:
        mp = ('s_and_b32 s30, s28, 1\ns_lshl_b32 s30, s30, 2\ns_lshr_b32 s31, s29, 3\ns_add_u32 s30, s30, s31\n'
              's_lshr_b32 s28, s28, 1\ns_lshl_b32 s28, s28, 3\ns_and_b32 s31, s29, 7\ns_add_u32 s31, s31, s28')
    a(f'''
    s_cmp_ge_u32 s2, 256
    s_cbranch_scc1 L_g1_done
    {sp.start()}
    s_load_dwordx2 s[4:5], s[0:1], 120
    s_load_dwordx4 s[20:23], s[0:1], 80
    s_load_dwordx4 s[24:27], s[0:1], 24
    s_load_dwordx4 s[44:47], s[0:1], 8
    s_load_dwordx2 s[52:53], s[0:1], 56
    s_load_dwordx4 s[56:59], s[0:1], 40
    s_load_dwordx2 s[64:65], s[0:1], 96
    v_lshrrev_b32 v1, 6, v0
    v_and_b32 v0, 63, v0
    v_readfirstlane_b32 s3, v1
    s_and_b32 s28, s2, 7
    s_lshr_b32 s29, s2, 3
    {mp}
    s_lshr_b32 s32, s3, 1
    s_and_b32 s33, s3, 1
    s_and_b32 s40, s31, 1
    s_lshl_b32 s41, s40, 1
    ''')
    V_F, V_S, V_A, V_RF, V_RS = 1, 8, 10, 11, 12
    T0, T1, T2 = 16, 17, 18
    for i in range(7):
        a(f'''
        v_add_u32 v{T0}, {64*i}, v0
        v_mul_u32_u24 v{T1}, 4682, v{T0}
        v_lshrrev_b32 v{T1}, 16, v{T1}
        v_mul_u32_u24 v{T2}, 14, v{T1}
        v_sub_u32 v{T0}, v{T0}, v{T2}
        v_add_u32 v{T0}, s41, v{T0}
        v_subrev_u32 v{T2}, 14, v{T0}
        v_min_u32 v{T0}, v{T0}, v{T2}
        v_lshlrev_b32 v{T2}, 1, v{T1}
        v_and_b32 v{T2}, 8, v{T2}
        v_lshrrev_b32 v{V_F+i}, 1, v{T1}
        v_and_b32 v{V_F+i}, 4, v{V_F+i}
        v_and_b32 v{T1}, 0x13, v{T1}
        v_or3_b32 v{T1}, v{T1}, v{T2}, v{V_F+i}
        v_mul_u32_u24 v{T1}, 7168, v{T1}
        v_lshl_add_u32 v{V_F+i}, v{T0}, 4, v{T1}
        ''')
        if i % 4:
            a(f'v_subrev_u32 v{V_F+i}, {1024*(i%4)}, v{V_F+i}')
    a(f'''
    v_lshrrev_b32 v{T0}, 3, v0
    v_lshrrev_b32 v{T1}, 4, v0
    v_and_b32 v{T2}, 7, v0
    v_xor_b32 v{T1}, v{T1}, v{T2}
    v_lshlrev_b32 v{T0}, 11, v{T0}
    v_lshl_add_u32 v{V_S}, v{T1}, 4, v{T0}
    v_xor_b32 v{V_S+1}, 64, v{V_S}
    v_add_u32 v{V_S+1}, {8*2048-1024}, v{V_S+1}
    v_lshlrev_b32 v{V_A}, 4, v0
    v_and_b32 v14, 15, v0
    v_lshlrev_b32 v14, 1, v14
    s_waitcnt lgkmcnt(0)
    s_mov_b32 s6, {WS_BYTES}
    s_mov_b32 s7, 0x20000
    s_cmp_eq_u32 s32, 0
    s_cselect_b32 s8, s20, s22
    s_cselect_b32 s9, s21, s23
    s_cselect_b32 s12, s24, s26
    s_cselect_b32 s13, s25, s27
    s_mov_b32 s10, {1024*3584*2}
    s_mov_b32 s11, 0x20000
    s_mov_b32 s14, {1024*1024*2}
    s_mov_b32 s15, 0x20000
    s_lshl_b32 s34, s30, 2
    s_add_u32 s34, s34, s3
    s_lshl_b32 s42, s34, 2
    s_lshl_b32 s34, s34, 17
    s_add_u32 s34, s34, {XN_OFF}
    s_mul_i32 s35, s31, 224
    s_mul_i32 s36, s33, {32*7168}
    s_add_u32 s35, s35, s36
    s_lshl_b32 s36, s31, 1
    s_add_u32 s36, s36, s33
    s_lshl_b32 s36, s36, 15
    s_mul_i32 s37, s32, {UP_OFF}
    s_mul_i32 s38, s33, 7168
    s_add_u32 s37, s37, s38
    s_lshl_b32 s38, s3, 11
    s_add_u32 s38, s38, {SSM_OFF}
    s_mov_b32 s48, s46
    s_mov_b32 s49, s47
    s_mov_b32 s46, 2048
    s_mov_b32 s47, 0x20000
    s_mov_b32 s50, 2048
    s_mov_b32 s51, 0x20000
    s_mov_b32 s54, 2048
    s_mov_b32 s55, 0x20000
    s_lshl_b32 s43, s31, 6
    ''')
    st = Stream(lds_age=lds_age)
    MT, NT, SPS = 4, 18, 2
    def accn(t): return ('v', 32 + t * 4) if t < 56 else ('a', (t - 56) * 4)
    def acc(t): p, b = accn(t); return vr(b, 4, p)
    def afr(i): return ar(64 + i * 4, 4)
    def bfr(i, off=0, n=4): return ar(128 + i * 4 + off, n)
    A_STASH = 176
    def dmaB(stage):
        ops = []
        if stage >= NST: return ops
        b = (stage % 4) * STG
        for i in range(7):
            pre = f's_add_u32 m0, s37, {b + (i//4)*4096}' if i % 4 == 0 else None
            post = f's_add_u32 s35, s35, {64*7168}' if i == 6 else None
            ops.append((pre, f'buffer_load_dwordx4 v{V_F+i}, s[8:11], s35 offen offset:{1024*(i%4)} lds', ('B', stage, i), post))
        for i in range(2):
            pre = f's_add_u32 m0, s38, {b}' if i == 0 else None
            post = 's_add_u32 s36, s36, 128' if i == 1 else None
            ops.append((pre, f'buffer_load_dwordx4 v{V_S+i}, s[12:15], s36 offen offset:{1024*i} lds', ('B', stage, 7 + i), post))
        return ops
    def ldA(gs):
        ops = []
        if gs >= NST * SPS: return ops
        for m in range(MT):
            f = gs * MT + m
            post = 's_add_u32 s34, s34, 4096' if m == 3 else None
            ops.append((None, f'buffer_load_dwordx4 {afr(f % 16)}, v{V_A}, s[4:7], s34 offen offset:{1024*m}', ('A', gs, m), post))
        return ops
    def emit_vm(op, pre_done=False):
        pre, text, tag, post = op
        if pre and not pre_done:
            st.raw(pre); st.raw('s_nop 0')
        st.mem('vm', text, tag)
        if post: st.raw(post)
    def rdB(gs, j):
        ops = []
        if gs >= NST * SPS: return ops
        s = gs % SPS
        slot = (gs * NT + j) % ring
        if j < 4:
            ops.append((f'ds_read_b128 {bfr(slot)}, v{V_RS+s} offset:{SSM_OFF + j*2048}', ('F', gs, j, 0)))
        else:
            jj = j - 4
            for q in range(2):
                off = (jj & 1) * UP_OFF + (32 * s + 8 * q) * 224 + 32 * (jj >> 1)
                ops.append((f'ds_read_b64_tr_b16 {bfr(slot, 2*q, 2)}, v{V_RF} offset:{off}', ('F', gs, j, q)))
        return ops
    def stage_switch(stage):
        st.need([('B', stage, 8)])
        st.raw('s_barrier')
        if stage > 0:
            d = STG if stage % 4 else -3 * STG
            for v in (V_RF, V_RS, V_RS + 1):
                st.raw(f'v_add_u32 v{v}, {d & 0xffffffff:#x}, v{v}')
    for pj in range(2):
        for i, srd in enumerate((44, 48, 52)):
            st.mem('vm', f'buffer_load_ushort v{32+pj*4+i}, v14, s[{srd}:{srd+3}], s43 offen offset:{32*pj}', ('P', pj, i))
    for op in dmaB(0): emit_vm(op)
    for gs in range(SPS):
        for op in ldA(gs): emit_vm(op)
    for op in dmaB(1): emit_vm(op)
    for gs in range(SPS, 2 * SPS - 1):
        for op in ldA(gs): emit_vm(op)
    st.raw(f'''
    v_lshrrev_b32 v{T0}, 5, v0
    v_bfe_u32 v{T1}, v0, 2, 3
    v_lshl_add_u32 v{T1}, v{T0}, 4, v{T1}
    v_mul_u32_u24 v{T1}, 224, v{T1}
    v_and_b32 v{T2}, 3, v0
    v_lshl_add_u32 v{V_RF}, v{T2}, 3, v{T1}
    v_lshrrev_b32 v{T0}, 4, v0
    v_bfe_u32 v{T1}, v0, 1, 3
    v_xor_b32 v{T1}, v{T1}, v{T0}
    v_and_b32 v{T2}, 15, v0
    v_lshlrev_b32 v{T2}, 7, v{T2}
    v_lshl_add_u32 v{V_RS}, v{T1}, 4, v{T2}
    v_xor_b32 v{V_RS+1}, 64, v{V_RS}
    v_and_b32 v{T0}, 16, v0
    v_cmp_ne_u32 s[66:67], 0, v{T0}
    v_cmp_lt_u32 s[68:69], 31, v0
    ''')
    st.need([('P', 1, 2)])
    def params(pj):
        b = 48 + 32 * pj; lre, lim, ld = 32 + pj * 4, 33 + pj * 4, 34 + pj * 4
        t = b + 16
        o = f'''
        v_lshlrev_b32 v{lre}, 16, v{lre}
        v_lshlrev_b32 v{lim}, 16, v{lim}
        v_lshlrev_b32 v{ld}, 16, v{ld}
        v_mul_f32 v{ld}, 0x3fb8aa3b, v{ld}
        v_exp_f32 v{ld}, v{ld}
        v_mul_f32 v{t+4}, v{lre}, v{lre}
        v_cvt_pk_bf16_f32 v{ld}, v{ld}, v{ld}
        v_lshlrev_b32 v{ld}, 16, v{ld}
        v_mul_f32 v{t}, v{ld}, v{lre}
        v_mul_f32 v{t+1}, v{ld}, v{lim}
        v_mul_f32 v{t}, 0x3fb8aa3b, v{t}
        v_mul_f32 v{t+1}, 0.15915494, v{t+1}
        v_exp_f32 v{t}, v{t}
        v_rndne_f32 v{t+2}, v{t+1}
        v_sub_f32 v{t+1}, v{t+1}, v{t+2}
        v_cos_f32 v{t+2}, v{t+1}
        v_sin_f32 v{t+3}, v{t+1}
        v_fmac_f32 v{t+4}, v{lim}, v{lim}
        v_mul_f32 v{b}, v{t}, v{t+2}
        v_mul_f32 v{b+1}, v{t}, v{t+3}
        v_rcp_f32 v{t+4}, v{t+4}
        v_add_f32 v{t}, -1.0, v{b}
        v_add_f32 v{t+4}, v{t+4}, v{t+4}
        v_mul_f32 v{t+1}, v{t}, v{lre}
        v_mul_f32 v{t+2}, v{b+1}, v{lre}
        v_fmac_f32 v{t+1}, v{b+1}, v{lim}
        v_fma_f32 v{t+2}, -v{t}, v{lim}, v{t+2}
        v_mul_f32 v{b+2}, v{t+1}, v{t+4}
        v_mul_f32 v{b+3}, v{t+2}, v{t+4}
        '''.split('\n')
        o = [x.strip() for x in o if x.strip()]
        o += cfma(t, b, b, None) + cfma(t + 2, t, t, None) + cfma(t, t + 2, t + 2, None) + cfma(b + 4, t, t, None)
        for k in (4, 6, 8, 10):
            o += cfma(b + k + 2, b + k, b + k, None)
        o += [f'v_cndmask_b32 v{t}, 1.0, v{b+4}, s[66:67]', f'v_cndmask_b32 v{t+1}, 0, v{b+5}, s[66:67]',
              f'v_cndmask_b32 v{t+2}, 1.0, v{b+6}, s[68:69]', f'v_cndmask_b32 v{t+3}, 0, v{b+7}, s[68:69]']
        o += cfma(t + 4, t, t + 2, None)
        o += [f'v_cndmask_b32 v{t}, 1.0, v{b+8}, s[16:17]', f'v_cndmask_b32 v{t+1}, 0, v{b+9}, s[16:17]',
              f'v_cndmask_b32 v{t+2}, 1.0, v{b+10}, s[18:19]', f'v_cndmask_b32 v{t+3}, 0, v{b+11}, s[18:19]']
        o += cfma(t + 6, t, t + 2, None) + cfma(b + 14, t + 4, t + 6, None)
        o += [f'v_mov_b32 v{b+10}, v{t+4}', f'v_mov_b32 v{b+11}, v{t+5}']
        o += [f'v_accvgpr_write_b32 a{A_STASH+16*pj+k}, v{b+k}' for k in range(16)]
        return o
    st.raw('s_cmp_eq_u32 s33, 1\ns_cselect_b64 s[16:17], -1, 0\ns_cmp_eq_u32 s32, 1\ns_cselect_b64 s[18:19], -1, 0')
    st.raw('\n'.join(ilv(params(0), params(1))))
    stage_switch(0)
    st.raw(sp())
    D = ring - 1
    for j in range(D):
        for t, tag in rdB(0, j): st.mem('lds', t, tag)
    if stamp: st.drain('lds')
    pendB = list(dmaB(2))
    marks = []
    vslots = vm_slots or [2, 10, 18, 26, 34, 42, 50, 58, 66]
    for gs in range(NST * SPS):
        stage, s = divmod(gs, SPS)
        if s == 0: marks.append(st.mark())
        pendA = list(ldA(gs + 2 * SPS - 1))
        for j in range(NT):
            ngs, nj = divmod(gs * NT + j + D, NT)
            sw = ngs // SPS if (nj == 0 and ngs % SPS == 0 and ngs < NST * SPS) else None
            rd = rdB(ngs, nj)
            for m in range(MT):
                t = j * MT + m
                needs = [('F', gs, j, 0 if j < 4 else 1), ('A', gs, MT - 1)]
                bf = bfr((gs * NT + j) % ring); af = afr((gs * MT + m) % 16)
                c = acc(t) if gs > 0 else '0'
                nxt = None
                if t in vslots:
                    q = pendA if pendA else pendB
                    if q: nxt = q.pop(0)
                if nxt and nxt[0]: st.raw(nxt[0])
                st.mfma(f'{MFMA} {acc(t)}, {af}, {bf}, {c}' if j < 4 else f'{MFMA} {acc(t)}, {bf}, {af}, {c}', needs)
                if m == 0 and sw is not None:
                    assert sw == 1 or not pendB, pendB
                    for op in pendB: emit_vm(op)
                    stage_switch(sw)
                    pendB = list(dmaB(sw + 2))
                if nxt: emit_vm(nxt, True)
                if m < len(rd): st.mem('lds', *rd[m])
        assert not pendA
    marks.append(st.mark())
    body = st.out
    if roll:
        b0 = merge_bodies([body[marks[i]:marks[i + 4]] for i in (1, 5, 9)])
        a('\n'.join(body[:marks[1]]))
        a('s_mov_b32 s39, 3\nL_g1_loop:')
        a('\n'.join(b0))
        a('s_sub_u32 s39, s39, 1\ns_cmp_lg_u32 s39, 0\ns_cbranch_scc1 L_g1_loop')
        a('\n'.join(body[marks[13]:]))
    else:
        a('\n'.join(body))
    a(sp())
    if pf2:
        a(f'''
        s_mov_b32 s60, s58
        s_mov_b32 s61, s59
        s_mov_b32 s58, {1024*1024*2}
        s_mov_b32 s59, 0x20000
        s_mov_b32 s62, {1024*1024*2}
        s_mov_b32 s63, 0x20000
        s_mov_b32 s8, s64
        s_mov_b32 s9, s65
        s_lshl_b32 s39, s2, 2
        s_add_u32 s39, s39, s3
        s_lshl_b32 s39, s39, 6
        v_add_u32 v1, s39, v0
        v_mul_u32_u24 v1, {pf2}, v1
        ''')
        for k in range(128 // pf2):
            a(f'buffer_load_dword a{240+k}, v1, s[8:11], 0 offen')
            if k == 0:
                a('buffer_load_dword a244, v1, s[56:59], 0 offen\nbuffer_load_dword a245, v1, s[60:63], 0 offen')
            a(f'v_add_u32 v1, {65536*pf2}, v1')
    def unstash(pj, k, dst):
        return [f'v_accvgpr_read_b32 v{dst+i}, a{A_STASH+16*pj+k+i}' for i in range(2)]
    LAM = (2, 4); SS = (6, 8); TA = (12, 14); TB = (16, 18); HH = (20, 22)
    def upair(pj, i):
        return (32 if i % 2 == 0 else 64) + pj * 16 + (i & ~1)
    a('\n'.join(unstash(0, 0, LAM[0]) + unstash(1, 0, LAM[1]) + unstash(0, 2, SS[0]) + unstash(1, 2, SS[1])))
    def scale(pj, i):
        R, I = 32 + pj * 16 + i, 64 + pj * 16 + i; s = SS[pj]
        return [f'v_pk_mul_f32 {p2(TA[pj])}, {p2(R)}, {p2(s)} op_sel_hi:[0,1]',
                f'v_pk_mul_f32 {p2(TB[pj])}, {p2(R)}, {p2(s)} op_sel:[1,0]',
                f'v_pk_fma_f32 {p2(R)}, {p2(I)}, {p2(s)}, {p2(TA[pj])} op_sel:[0,1,0] op_sel_hi:[0,0,1] neg_lo:[1,0,0]',
                f'v_pk_fma_f32 {p2(I)}, {p2(I)}, {p2(s)}, {p2(TB[pj])} op_sel:[1,1,0] op_sel_hi:[1,0,1] neg_lo:[1,0,0]']
    TC = (24, 26)
    def chain(pj):
        o = []
        for i in range(1, 16):
            o += cfma(HH[pj], LAM[pj], HH[pj] if i > 1 else upair(pj, 0), upair(pj, i), TC[pj])
        return o
    sc = [sum((scale(pj, i) for i in range(0, 16, 2)), []) for pj in range(2)]
    ch = [chain(pj) for pj in range(2)]
    a('\n'.join(ilv(sc[0][:4], sc[1][:4])))
    a('\n'.join(ilv(sc[0][4:], ch[0][:2], sc[1][4:], ch[1][:2])[:12]))
    rest = ilv(sc[0][8:], ch[0][2:], sc[1][8:], ch[1][2:])
    a('\n'.join(rest))
    L16, L32 = (6, 8), (28, 30)
    EA, EB = TA, TB
    a('\n'.join(unstash(0, 4, L16[0]) + unstash(1, 4, L16[1]) + unstash(0, 6, L32[0]) + unstash(1, 6, L32[1])))
    a(f'v_mov_b64 {p2(EA[0])}, {p2(HH[0])}\nv_mov_b64 {p2(EA[1])}, {p2(HH[1])}\ns_nop 1')
    for pj in range(2):
        for c in range(2):
            a(f'v_permlane16_swap_b32 v{EA[pj]+c}, v{HH[pj]+c}')
    a('\n'.join(ilv(*[cfma(HH[pj], L16[pj], EA[pj], HH[pj]) for pj in range(2)])))
    a(f'v_mov_b64 {p2(EB[0])}, {p2(HH[0])}\nv_mov_b64 {p2(EB[1])}, {p2(HH[1])}\ns_nop 1')
    for pj in range(2):
        for c in range(2):
            a(f'v_permlane32_swap_b32 v{EB[pj]+c}, v{HH[pj]+c}')
    a('\n'.join(ilv(*[cfma(HH[pj], L32[pj], EB[pj], HH[pj]) for pj in range(2)])))
    a(f'''
    v_and_b32 v1, 15, v0
    v_lshlrev_b32 v1, 4, v1
    s_lshl_b32 s39, s3, 8
    v_add_u32 v11, {WX_OFF}, v1
    v_add_u32 v24, s39, v11
    ds_write_b128 v24, v[20:23]
    ''')
    for pj in range(2):
        for c in range(2):
            a(f'v_cndmask_b32 v{EB[pj]+c}, 0, v{EB[pj]+c}, s[68:69]')
    a('\n'.join(ilv(*[cfma(EA[pj], L16[pj], EB[pj], EA[pj]) for pj in range(2)])))
    for pj in range(2):
        for c in range(2):
            a(f'v_cndmask_b32 v{EA[pj]+c}, v{EB[pj]+c}, v{EA[pj]+c}, s[66:67]')
    LP = EA
    L64 = (6, 8)
    a('\n'.join(unstash(0, 8, L64[0]) + unstash(1, 8, L64[1])))
    a(f'''
    s_waitcnt lgkmcnt(0)
    s_barrier
    ds_read_b128 v[16:19], v11
    ds_read_b128 v[20:23], v11 offset:256
    ds_read_b128 v[24:27], v11 offset:512
    ds_read_b128 v[28:31], v11 offset:768
    s_lshl_b32 s39, s31, 11
    s_add_u32 s39, s39, {AGG_OFF}
    s_add_u32 s44, s4, s39
    s_addc_u32 s45, s5, 0
    s_sub_u32 s43, 7, s30
    s_lshl_b32 s43, s43, 8
    s_waitcnt lgkmcnt(2)
    ''')
    a('\n'.join(ilv(*[cfma(20 + 2 * pj, L64[pj], 16 + 2 * pj, 20 + 2 * pj) for pj in range(2)])))
    a('s_waitcnt lgkmcnt(0)')
    a('\n'.join(ilv(*[cfma(24 + 2 * pj, L64[pj], 20 + 2 * pj, 24 + 2 * pj) for pj in range(2)])))
    a('\n'.join(ilv(*[cfma(28 + 2 * pj, L64[pj], 24 + 2 * pj, 28 + 2 * pj) for pj in range(2)])))
    a('s_cmp_lg_u32 s3, 0\ns_cbranch_scc1 L_g1_nopub')
    for c in range(4):
        a(f'v_and_b32 v{28+c}, -2, v{28+c}')
    a('''
    s_mov_b64 exec, 0xffff
    buffer_store_dwordx4 v[28:31], v1, s[44:47], s43 offen sc1
    s_mov_b64 exec, -1
    L_g1_nopub:
    ''')
    for c in range(4):
        a(f'v_cndmask_b32 v{16+c}, 0, v{16+c}, s[16:17]\nv_cndmask_b32 v{20+c}, v{20+c}, v{24+c}, s[16:17]')
    for c in range(4):
        a(f'v_cndmask_b32 v{16+c}, v{16+c}, v{20+c}, s[18:19]')
    MG = (6, 8)
    a('\n'.join(unstash(0, 10, MG[0]) + unstash(1, 10, MG[1])))
    a('\n'.join(ilv(*[cfma(LP[pj], MG[pj], 16 + 2 * pj, LP[pj]) for pj in range(2)])))
    a(sp())
    a(f'''
    s_lshr_b32 s39, s31, 3
    s_add_u32 s42, s42, s39
    s_mul_i32 s42, s42, {HQ}
    s_add_u32 s42, s42, {H_OFF}
    s_bfe_u32 s39, s31, 0x20001
    s_mul_i32 s34, s39, {7*4096}
    s_add_u32 s34, s34, s42
    s_lshl_b32 s35, s40, 10
    s_add_u32 s35, s35, s34
    s_add_u32 s35, s35, {3*4096}
    s_lshl_b32 s36, s40, 14
    s_add_u32 s34, s34, s36
    s_lshl_b32 s39, s39, 14
    s_add_u32 s36, s39, s42
    s_lshl_b32 s39, s40, 12
    s_add_u32 s36, s36, s39
    s_add_u32 s36, s36, {28*4096}
    s_mov_b32 s20, 0xbfb8aa3b
    s_mov_b32 s21, 0xbfb8aa3b
    ''')
    def tile_regs(jj, mat, m, pre):
        p, b = accn((4 + 2 * jj + mat) * 4 + m)
        if p == 'v': return b
        d = 96 + b
        pre += [f'v_accvgpr_read_b32 v{d+i}, a{b+i}' for i in range(4)]
        return d
    def swiglu(tiles, tmp, out, store):
        pre = []
        gs_ = [tile_regs(jj, 0, m, pre) for jj, m in tiles]; us = [tile_regs(jj, 1, m, pre) for jj, m in tiles]
        G = [g + i for g in gs_ for i in (0, 2)]; U = [u + i for u in us for i in (0, 2)]
        o = list(pre)
        if mimic:
            for r in G + U:
                o += [f'v_cvt_pk_bf16_f32 v{r+1}, v{r}, v{r+1}', f'v_lshlrev_b32 v{r}, 16, v{r+1}', f'v_and_b32 v{r+1}, 0xffff0000, v{r+1}']
        o += [f'v_pk_mul_f32 {p2(tmp+2*k)}, {p2(G[k])}, s[20:21]' for k in range(4)]
        o += [f'v_exp_f32 v{tmp+k}, v{tmp+k}' for k in range(8)]
        if not mimic:
            o += [f'v_pk_mul_f32 {p2(U[k])}, {p2(G[k])}, {p2(U[k])}' for k in range(4)]
        o += [f'v_pk_add_f32 {p2(tmp+2*k)}, {p2(tmp+2*k)}, 1.0 op_sel_hi:[1,0]' for k in range(4)]
        o += [f'v_rcp_f32 v{tmp+k}, v{tmp+k}' for k in range(8)]
        if mimic:
            o += [f'v_pk_mul_f32 {p2(tmp+2*k)}, {p2(G[k])}, {p2(tmp+2*k)}' for k in range(4)]
            for k in range(4):
                r = tmp + 2 * k
                o += [f'v_cvt_pk_bf16_f32 v{r+1}, v{r}, v{r+1}', f'v_lshlrev_b32 v{r}, 16, v{r+1}', f'v_and_b32 v{r+1}, 0xffff0000, v{r+1}']
        o += [f'v_pk_mul_f32 {p2(U[k])}, {p2(U[k])}, {p2(tmp+2*k)}' for k in range(4)]
        o += [f'v_cvt_pk_bf16_f32 v{out+k}, v{U[k]}, v{U[k]+1}' for k in range(4)]
        o += [f'buffer_store_dwordx4 v[{out}:{out+3}], v{V_A}, s[4:7], {store} {hst}']
        a('\n'.join(o))
    n = 0
    for b in range(3):
        for m in range(4):
            swiglu([(2 * b, m), (2 * b + 1, m)], 16, 24 + 4 * (n % 2), f's34 offen offset:{1024*m}'); n += 1
        a('s_add_u32 s34, s34, 4096')
    for h in range(2):
        swiglu([(6, 2 * h), (6, 2 * h + 1)], 16, 24 + 4 * (n % 2), f's35 offen offset:{2048*h}'); n += 1
    a(sp())
    L256 = (6, 8); MT_ = (16, 18)
    a('\n'.join(unstash(0, 12, L256[0]) + unstash(1, 12, L256[1]) + unstash(0, 14, MT_[0]) + unstash(1, 14, MT_[1])))
    a(f'v_add_u32 v1, s43, v1\ns_mov_b32 s39, {SPIN_MAX}\nL_g1_poll:')
    for i in range(1, 8):
        a(f'buffer_load_dwordx4 v[{92+4*i}:{95+4*i}], v1, s[44:47], 0 offen offset:{256*i} sc1')
    a('s_sub_u32 s39, s39, 1\ns_waitcnt vmcnt(0)\ns_cbranch_scc1 L_g1_go')
    a('v_or3_b32 v20, v96, v97, v98')
    for r in range(99, 123, 2):
        a(f'v_or3_b32 v20, v20, v{r}, v{r+1}')
    a('''
    v_or_b32 v20, v20, v123
    v_and_b32 v20, 1, v20
    v_cmp_ne_u32 vcc, 0, v20
    s_cbranch_vccnz L_g1_poll
    L_g1_go:
    ''')
    a(sp())
    for i in range(6, 0, -1):
        a('\n'.join(ilv(*[cfma(92 + 4 * i + 2 * pj, L256[pj], 96 + 4 * i + 2 * pj, 92 + 4 * i + 2 * pj) for pj in range(2)])))
    a('\n'.join(ilv(*[cfma(LP[pj], MT_[pj], 96 + 2 * pj, LP[pj]) for pj in range(2)])))
    def pass2(pj):
        o = []
        for i in range(16):
            o += cfma(upair(pj, i), LAM[pj], upair(pj, i - 1) if i else LP[pj], upair(pj, i))
            if i % 2 == 1:
                e, od = upair(pj, i - 1), upair(pj, i)
                o += [f'v_cvt_pk_bf16_f32 v{128+pj*8+i//2}, v{e}, v{od}',
                      f'v_cvt_pk_bf16_f32 v{144+pj*8+i//2}, -v{e+1}, -v{od+1}']
        return o
    a('\n'.join(ilv(pass2(0), pass2(1))))
    a(f'''
    s_mul_i32 s39, s3, 9216
    v_and_b32 v2, 15, v0
    v_mul_u32_u24 v2, 144, v2
    v_lshrrev_b32 v3, 4, v0
    v_lshl_add_u32 v2, v3, 5, v2
    v_add_u32 v2, s39, v2
    v_bfe_u32 v4, v0, 2, 2
    v_lshl_add_u32 v4, v3, 3, v4
    v_mul_u32_u24 v4, 144, v4
    v_and_b32 v5, 3, v0
    v_lshl_add_u32 v4, v5, 5, v4
    v_add_u32 v4, s39, v4
    ''')
    for comp in range(2):
        for pj in range(2):
            for h in range(2):
                r = 128 + comp * 16 + pj * 8 + 4 * h
                a(f'ds_write_b128 v2, v[{r}:{r+3}] offset:{comp*4608 + pj*16*144 + 16*h}')
    a('s_waitcnt lgkmcnt(0)')
    for comp in range(2):
        for m in range(4):
            for q in range(2):
                r = 160 + (comp * 4 + m) * 4 + 2 * q
                a(f'ds_read_b64_tr_b16 v[{r}:{r+1}], v4 offset:{comp*4608 + q*4*144 + m*8}')
    for comp in range(2):
        a(f's_waitcnt lgkmcnt({8 if comp == 0 else 0})')
        for m in range(4):
            r = 160 + (comp * 4 + m) * 4
            a(f'buffer_store_dwordx4 v[{r}:{r+3}], v{V_A}, s[4:7], s36 offen offset:{1024*m} {hst}')
        a('s_add_u32 s36, s36, 8192')
    a(sp.finish('s3', 4))
    a('L_g1_done:\ns_endpgm')
    return kernel_desc('g1_kernel', 512, 256)

G2_LDS = 131072

def gen_g2(a, stamp=False, orient='t', pd=4, ad=6, ring2=6, lds_age=3, vm_slots2=None, **kw):
    sp = Stamps(stamp, 2)
    ring = ring2
    kernel_head(a, 'g2_kernel')
    NST, NFF = 22, 14
    V_F, V_S, V_A, V_RF, V_RS = 1, 5, 9, 10, 18
    T0, T1, T2, T3 = 20, 21, 22, 23
    a(f'''
    s_cmp_ge_u32 s2, 256
    s_cbranch_scc1 L_g2_done
    {sp.start()}
    s_load_dwordx2 s[4:5], s[0:1], 120
    s_load_dwordx4 s[8:11], s[0:1], 96
    s_load_dwordx4 s[12:15], s[0:1], 40
    s_load_dwordx2 s[24:25], s[0:1], 0
    s_load_dwordx2 s[44:45], s[0:1], 64
    v_lshrrev_b32 v1, 6, v0
    v_and_b32 v0, 63, v0
    v_readfirstlane_b32 s3, v1
    s_bfe_u32 s32, s2, 0x20001
    s_and_b32 s30, s2, 1
    s_lshl_b32 s30, s30, 2
    s_lshr_b32 s31, s2, 6
    s_add_u32 s30, s30, s31
    s_bfe_u32 s31, s2, 0x30003
    s_lshl_b32 s33, s32, 2
    v_lshlrev_b32 v{V_A}, 4, v0
    v_lshrrev_b32 v{T0}, 4, v0
    v_and_b32 v{T1}, 15, v0
    v_lshlrev_b32 v{T2}, 1, v{T0}
    v_xor_b32 v{T1}, v{T1}, v{T2}
    v_xor_b32 v{T1}, s33, v{T1}
    v_lshlrev_b32 v{T2}, 11, v{T0}
    v_lshl_add_u32 v{V_F}, v{T1}, 4, v{T2}
    v_xor_b32 v{V_F+1}, 128, v{V_F}
    v_add_u32 v{V_F+2}, {2*7168}, v{V_F}
    v_add_u32 v{V_F+3}, {3*7168}, v{V_F+1}
    v_add_u32 v{V_F+1}, 7168, v{V_F+1}
    s_lshl_b32 s34, s30, 2
    s_add_u32 s34, s34, s3
    s_lshl_b32 s40, s34, 17
    s_lshl_b32 s41, s34, 6
    s_lshl_b32 s34, s34, 2
    s_add_u32 s34, s34, s32
    s_mul_i32 s34, s34, {HQ}
    s_add_u32 s34, s34, {H_OFF}
    s_mul_i32 s35, s32, {896*2048}
    s_lshl_b32 s36, s3, 15
    s_add_u32 s35, s35, s36
    s_lshl_b32 s36, s31, 8
    s_add_u32 s35, s35, s36
    s_lshl_b32 s37, s3, 12
    s_waitcnt lgkmcnt(0)
    s_mov_b32 s6, {WS_BYTES}
    s_mov_b32 s7, 0x20000
    s_mov_b32 s20, s10
    s_mov_b32 s21, s11
    s_mov_b32 s10, {3584*1024*2}
    s_mov_b32 s11, 0x20000
    ''')
    late = f'''
    s_mov_b32 s22, {2048*1024*4}
    s_mov_b32 s23, 0x20000
    s_mov_b32 s16, s14
    s_mov_b32 s17, s15
    s_mov_b32 s14, {1024*1024*2}
    s_mov_b32 s15, 0x20000
    s_mov_b32 s18, {1024*1024*2}
    s_mov_b32 s19, 0x20000
    s_mov_b32 s26, {2048*1024*2}
    s_mov_b32 s27, 0x20000
    s_mov_b32 s46, 2048
    s_mov_b32 s47, 0x20000
    s_xor_b32 s36, s3, s32
    s_lshl_b32 s38, s31, 2
    s_add_u32 s36, s36, s38
    s_lshl_b32 s36, s36, 16
    s_lshl_b32 s39, s32, 9
    s_add_u32 s36, s36, s39
    s_add_u32 s38, s38, s32
    v_lshrrev_b32 v{T1}, 3, v0
    v_and_b32 v{T2}, 7, v0
    v_xor_b32 v{T2}, v{T2}, v{T0}
    v_lshlrev_b32 v{T1}, 11, v{T1}
    v_lshl_add_u32 v{V_S}, v{T2}, 4, v{T1}
    v_xor_b32 v{V_S+1}, 64, v{V_S}
    v_add_u32 v{V_S+2}, {2*15360}, v{V_S}
    v_add_u32 v{V_S+3}, {3*15360}, v{V_S+1}
    v_add_u32 v{V_S+1}, 15360, v{V_S+1}
    v_lshrrev_b32 v{T1}, 2, v0
    v_and_b32 v{T2}, 7, v{T1}
    v_lshlrev_b32 v{T1}, 8, v{T1}
    v_lshl_add_u32 v{T1}, v{T2}, 5, v{T1}
    v_and_b32 v{T2}, 3, v0
    v_lshl_add_u32 v{V_RF}, v{T2}, 3, v{T1}
    ''' + '\n'.join(f'v_xor_b32 v{V_RF+j}, {32*j}, v{V_RF}' for j in range(1, 8)) + f'''
    v_bfe_u32 v{T1}, v0, 1, 3
    v_xor_b32 v{T1}, v{T1}, v{T0}
    v_and_b32 v{T2}, 15, v0
    v_lshlrev_b32 v{T2}, 7, v{T2}
    v_lshl_add_u32 v{V_RS}, v{T1}, 4, v{T2}
    v_xor_b32 v{V_RS+1}, 64, v{V_RS}
    '''
    st = Stream(lds_age=lds_age)
    MT, NT, SPS = 4, 8, 2
    NGS = NST * SPS
    VACC = 32
    def accb(j, m): return VACC + (j * 4 + m) * 4
    def acc(j, m): return vr(accb(j, m), 4)
    AR = ad + 1
    VSH = 160
    def shared(gs): return gs < 2 * NFF and gs % 7 == 3
    def afr(gs, m):
        if shared(gs): return vr(VSH + ((gs // 7) % 2) * 16 + m * 4, 4)
        return ar(((gs % AR) * 4 + m) * 4, 4)
    ABF = AR * 16
    assert ABF + ring * 4 <= 224
    def bfr(i, off=0, n=4): return ar(ABF + i * 4 + off, n)
    def dmaB(stage):
        ops = []
        if stage >= NST: return ops
        for i in range(4):
            pre = f's_add_u32 m0, s37, {(stage % 8) * 16384}' if i == 0 else None
            if stage < NFF:
                post = f's_add_u32 s35, s35, {64*2048}' if i == 3 else None
                t = f'buffer_load_dwordx4 v{V_F+i}, s[8:11], s35 offen offset:{1024*i} lds'
            else:
                comp = (stage - NFF) & 1
                post = 's_add_u32 s36, s36, 128' if i == 3 and comp else None
                t = f'buffer_load_dwordx4 v{V_S+i}, s[{12+4*comp}:{15+4*comp}], s36 offen offset:{1024*i} lds'
            ops.append((pre, t, ('B', stage, i), post))
        return ops
    def ldA(gs):
        ops = []
        if gs >= NGS: return ops
        for m in range(MT):
            post = 's_add_u32 s34, s34, 4096' if m == 3 else None
            ops.append((None, f'buffer_load_dwordx4 {afr(gs, m)}, v{V_A}, s[4:7], s34 offen offset:{1024*m}', ('A', gs, m), post))
        return ops
    def emit_vm(op, pre_done=False):
        pre, text, tag, post = op
        if pre and not pre_done:
            st.raw(pre); st.raw('s_nop 0')
        st.mem('vm', text, tag)
        if post: st.raw(post)
    def rdB(gs, j):
        ops = []
        if gs >= NGS: return ops
        stage, s = divmod(gs, SPS)
        slot = (gs * NT + j) % ring
        b = (stage % 4) * 16384
        if stage >= NFF:
            ops.append((f'ds_read_b128 {bfr(slot)}, v{V_RS+s} offset:{b + j*2048}', ('F', gs, j, 1)))
        else:
            for q in range(2):
                ops.append((f'ds_read_b64_tr_b16 {bfr(slot, 2*q, 2)}, v{V_RF+j} offset:{b + (32*s + 16*q)*256}', ('F', gs, j, q)))
        return ops
    def stage_switch(stage):
        st.need([('B', stage, 3)])
        st.raw('s_barrier')
    extra = []
    for m in range(4):
        extra.append((f's_add_u32 s42, s42, {4*2048}' if m else None, f'buffer_load_dwordx4 {ar(224+4*m,4)}, v26, s[24:27], s42 offen', ('X', m), None))
    for m in range(4):
        extra.append((None, f'buffer_load_dwordx4 {ar(240+4*m,4)}, v{V_A}, s[4:7], s43 offen offset:{1024*m}', ('X', 4 + m), None))
    for j in range(2):
        extra.append((None, f'buffer_load_ushort v{24+j}, v27, s[44:47], s48 offen offset:{32*j}', ('X', 8 + j), None))
    late += f'''
    v_bfe_u32 v{T1}, v0, 2, 2
    v_lshlrev_b32 v{T1}, 4, v{T1}
    v_and_b32 v{T2}, 3, v0
    v_add_u32 v28, v{T1}, v{T2}
    v_lshlrev_b32 v{T1}, 11, v28
    v_lshl_add_u32 v26, v{T0}, 4, v{T1}
    v_and_b32 v27, 15, v0
    v_lshlrev_b32 v27, 1, v27
    s_lshl_b32 s48, s38, 6
    s_add_u32 s42, s40, s48
    s_lshl_b32 s43, s38, 12
    s_add_u32 s43, s43, s40
    s_add_u32 s43, s43, {XN_OFF}
    '''
    apos = 0
    for s_ in range(pd):
        for op in dmaB(s_): emit_vm(op)
        while apos < min(ad, 2 * s_ + 2):
            for op in ldA(apos): emit_vm(op)
            apos += 1
    while apos < ad:
        for op in ldA(apos): emit_vm(op)
        apos += 1
    st.raw(late)
    stage_switch(0)
    st.raw(sp())
    D = ring - 1
    for j in range(D):
        for t, tag in rdB(0, j): st.mem('lds', t, tag)
    if stamp: st.drain('lds')
    pendB = list(dmaB(pd))
    vslots = vm_slots2 or [2, 7, 13, 18, 23, 29]
    for gs in range(NGS):
        pendA = list(ldA(gs + ad))
        for j in range(NT):
            ngs, nj = divmod(gs * NT + j + D, NT)
            sw = ngs // SPS if (nj == 0 and ngs % SPS == 0 and ngs < NGS) else None
            rd = rdB(ngs, nj)
            for m in range(MT):
                t = j * MT + m
                needs = [('F', gs, j, 1), ('A', gs, MT - 1)]
                bf = bfr((gs * NT + j) % ring); af = afr(gs, m)
                c = acc(j, m) if gs > 0 else '0'
                nxt = None
                if t in vslots:
                    q = pendA or pendB or (extra if gs + ad >= NGS else None)
                    if q: nxt = q.pop(0)
                if nxt and nxt[0]: st.raw(nxt[0])
                st.mfma(f'{MFMA} {acc(j,m)}, {af}, {bf}, {c}' if orient == 't' else f'{MFMA} {acc(j,m)}, {bf}, {af}, {c}', needs)
                if m == 0 and sw is not None:
                    assert sw == 1 or not pendB, pendB
                    for op in pendB: emit_vm(op)
                    stage_switch(sw)
                    pendB = list(dmaB(sw + pd))
                if m == 0 and ngs < NGS and ngs % 8 == 0 and ngs > 0:
                    if ngs // SPS < NFF: st.raw(f'v_xor_b32 v{V_RF+nj}, 0x10000, v{V_RF+nj}')
                    if nj < 2: st.raw(f'v_xor_b32 v{V_RS+nj}, 0x10000, v{V_RS+nj}')
                if nxt: emit_vm(nxt, True)
                if m < len(rd): st.mem('lds', *rd[m])
                if shared(gs + 1) and j == NT - 2:
                    st.need([('A', gs + 1, MT - 1)])
                    b = VSH + (((gs + 1) // 7) % 2) * 16 + (m >> 1) * 8
                    st.raw(f'v_swap_b32 v{b+2+(m&1)}, v{b+4+(m&1)}')
        assert not pendA
    assert not extra
    st.raw(sp())
    st.raw(f'''
    s_lshl_b32 s49, s2, 2
    s_add_u32 s49, s49, s3
    v_add_u32 v{T1}, 1, v0
    v_lshlrev_b32 v{T2}, 3, v{T1}
    v_xor_b32 v{T2}, s49, v{T2}
    v_lshlrev_b32 v{T2}, 6, v{T2}
    v_lshl_add_u32 v29, v{T1}, 2, v{T2}
    v_mov_b32 v30, 0
    s_mov_b32 s50, {FLG_OFF}
    ''')
    n = 0
    for d in range(1, 4):
        st.raw(f's_xor_b32 s51, s49, {d << 3}\ns_lshl_b32 s51, s51, 14\ns_add_u32 s51, s51, {PART_OFF + d*4096}')
        if d == 3: st.raw('s_nop 1')
        for k in range(4):
            o = VSH + 4 * (n % 8); n += 1
            b = accb(2 * d, 0) + 8 * k
            for i in range(4):
                st.raw(f'v_cvt_pk_bf16_f32 v{o+i}, v{b+2*i}, v{b+2*i+1}')
            st.mem('vm', f'buffer_store_dwordx4 v[{o}:{o+3}], v{V_A}, s[4:7], s51 offen offset:{1024*k} sc1')
    st.need([('X', 9)])
    DI, DD = 192, 200
    st.raw(f'''
    v_bfe_u32 v{T1}, v0, 1, 3
    v_lshlrev_b32 v{T2}, 2, v{T0}
    v_sub_u32 v{T1}, v{T2}, v{T1}
    v_and_b32 v{T2}, 1, v0
    v_lshlrev_b32 v{T2}, 4, v{T2}
    v_lshlrev_b32 v24, v{T2}, v24
    v_lshlrev_b32 v25, v{T2}, v25
    v_mov_b32 v{T3}, 0x3f80
    v_lshlrev_b32 v{T3}, v{T2}, v{T3}
    ''')
    for j in range(2):
        for w in range(4):
            st.raw(f'v_cmp_eq_i32 vcc, {8*j - w}, v{T1}\ns_nop 1\nv_cndmask_b32 v{DI+4*j+w}, 0, v{T3}, vcc\nv_cndmask_b32 v{DD+4*j+w}, 0, v{24+j}, vcc')
    st.raw('s_nop 1')
    for (dg, xb) in ((DI, 224), (DD, 240)):
        for j in range(2):
            for m in range(4):
                af, bf = ar(xb + 4 * m, 4), vr(dg + 4 * j, 4)
                st.raw(f'{MFMA} {acc(j,m)}, {af}, {bf}, {acc(j,m)}' if orient == 't' else f'{MFMA} {acc(j,m)}, {bf}, {af}, {acc(j,m)}')
    st.drain('vm')
    st.raw(f'''
    s_mov_b64 exec, 7
    buffer_store_dword v30, v29, s[4:7], s50 offen sc1
    s_mov_b64 exec, -1
    {sp()}
    s_lshl_b32 s51, s49, 6
    s_add_u32 s51, s51, s50
    s_mov_b32 s39, {SPIN_MAX}
    L_g2_poll:
    buffer_load_dwordx4 v[208:211], v30, s[4:7], s51 offen sc1
    s_sub_u32 s39, s39, 1
    s_waitcnt vmcnt(0)
    s_cbranch_scc1 L_g2_go
    v_or3_b32 v208, v209, v210, v211
    v_cmp_ne_u32 vcc, 0, v208
    s_cbranch_vccnz L_g2_poll
    L_g2_go:
    {sp()}
    s_lshl_b32 s51, s49, 14
    s_add_u32 s51, s51, {PART_OFF}
    ''')
    RB = 64
    for d in range(1, 4):
        st.raw('s_add_u32 s51, s51, 4096')
        for k in range(4):
            r = RB + ((d - 1) * 4 + k) * 4
            st.mem('vm', f'buffer_load_dwordx4 v[{r}:{r+3}], v{V_A}, s[4:7], s51 offen offset:{1024*k} sc1', ('R', d, k))
    if orient == 't':
        st.raw(f'''
        v_lshlrev_b32 v{T1}, 16, v{T0}
        v_lshl_add_u32 v31, v27, 1, v{T1}
        s_lshl_b32 s52, s41, 12
        s_lshl_b32 s53, s38, 7
        s_add_u32 s52, s52, s53
        ''')
    else:
        st.raw(f'''
        v_lshlrev_b32 v{T1}, 12, v28
        v_lshl_add_u32 v31, v{T0}, 4, v{T1}
        s_lshl_b32 s52, s41, 12
        s_lshl_b32 s53, s38, 7
        s_add_u32 s52, s52, s53
        ''')
    for d in range(1, 4):
        for k in range(4):
            st.need([('R', d, k)])
            r = RB + ((d - 1) * 4 + k) * 4
            for i in range(4):
                st.raw(f'v_lshlrev_b32 v{112+2*i}, 16, v{r+i}\nv_and_b32 v{113+2*i}, 0xffff0000, v{r+i}')
            for i in range(4):
                b = VACC + 8 * k + 2 * i
                st.raw(f'v_pk_add_f32 {p2(b)}, {p2(b)}, {p2(112+2*i)}')
    st.raw(sp())
    for m in range(4):
        if orient == 't':
            for r in range(4):
                for j in range(2):
                    st.raw(f'buffer_store_dword v{accb(j,m)+r}, v31, s[20:23], s52 offen offset:{64*j}')
                st.raw('s_add_u32 s52, s52, 4096')
        else:
            for j in range(2):
                st.raw(f'buffer_store_dwordx4 {acc(j,m)}, v31, s[20:23], s52 offen offset:{64*j}')
            st.raw('s_add_u32 s52, s52, 16384')
    a('\n'.join(st.out))
    a(sp.finish('s3', 4))
    a('L_g2_done:\ns_endpgm')
    return kernel_desc('g2_kernel', 512, 256)

def gen(**kw):
    a = Asm()
    hdr = ('; LayerNorm -> GEMM1 (B-projection + scan, gate/up + SwiGLU) -> GEMM2 (C-projection + down, split-K 4)\n'
           '; @launch kernel=ln_kernel grid=(256,1,1) block=(512,1,1) lds=0\n'
           f'; @launch kernel=g1_kernel grid=(256,1,1) block=(256,1,1) lds={G1_LDS}\n'
           f'; @launch kernel=g2_kernel grid=(256,1,1) block=(256,1,1) lds={G2_LDS}\n'
           '.amdgcn_target "amdgcn-amd-amdhsa--gfx950"\n')
    d = gen_ln(a, **kw) + gen_g1(a, **kw) + gen_g2(a, **kw)
    return hdr + a.text() + d

if __name__ == '__main__':
    kw = eval('dict(%s)' % (sys.argv[2] if len(sys.argv) > 2 else ''))
    open(sys.argv[1], 'w').write(gen(**kw))
```

```python
class Asm:
    def __init__(self):
        self.lines = []
    def __call__(self, s):
        for l in s.split('\n'):
            l = l.strip()
            if l:
                self.lines.append(l if l.endswith(':') or l.startswith('.') else '    ' + l)
    def text(self):
        return '\n'.join(self.lines) + '\n'

def kernel_head(a, name):
    a(f'.text\n.globl {name}\n.p2align 8\n.type {name},@function\n{name}:')

def kernel_desc(name, vgpr, accum, sgpr=102):
    return (f'.section .rodata,"a"\n.p2align 6\n.amdhsa_kernel {name}\n'
            f'  .amdhsa_next_free_vgpr {vgpr}\n  .amdhsa_next_free_sgpr {sgpr}\n'
            f'  .amdhsa_accum_offset {accum}\n  .amdhsa_group_segment_fixed_size 0\n'
            f'  .amdhsa_kernarg_size 128\n  .amdhsa_user_sgpr_count 2\n'
            f'  .amdhsa_user_sgpr_kernarg_segment_ptr 1\n  .amdhsa_system_sgpr_workgroup_id_x 1\n'
            f'  .amdhsa_float_denorm_mode_32 3\n'
            f'.end_amdhsa_kernel\n')

def vr(b, n=1, p='v'):
    return f'{p}{b}' if n == 1 else f'{p}[{b}:{b+n-1}]'
def ar(b, n=1):
    return vr(b, n, 'a')
def sr(b, n=1):
    return vr(b, n, 's')

class Stream:
    def __init__(self, lds_age=3, vm_age=10**9):
        self.out = []
        self.issued = {'lds': [], 'vm': []}
        self.index = {}
        self.covered = {'lds': 0, 'vm': 0}
        self.age = {'lds': lds_age, 'vm': vm_age}
        self.clock = 0
    def raw(self, text):
        for l in text.split('\n'):
            l = l.strip()
            if l:
                self.out.append(l)
    def need(self, tags):
        w = {}
        for t in tags:
            cls, idx = self.index[t]
            if idx >= self.covered[cls]:
                w[cls] = max(w.get(cls, -1), idx)
        parts = []
        for cls, idx in w.items():
            lst = self.issued[cls]
            while idx + 1 < len(lst) and self.clock - lst[idx + 1][1] >= self.age[cls]:
                idx += 1
            cap = 15 if cls == 'lds' else 63
            n = len(lst) - 1 - idx
            if n > cap:
                n = cap; idx = len(lst) - 1 - cap
            self.covered[cls] = idx + 1
            parts.append(('lgkmcnt(%d)' if cls == 'lds' else 'vmcnt(%d)') % n)
        if parts:
            self.out.append('s_waitcnt ' + ' '.join(sorted(parts, reverse=True)))
    def mem(self, cls, text, tag=None):
        lst = self.issued[cls]
        if tag is not None:
            self.index[tag] = (cls, len(lst))
        lst.append((tag, self.clock))
        self.out.append(text)
    def drain(self, cls):
        self.covered[cls] = len(self.issued[cls])
        self.out.append('s_waitcnt ' + ('lgkmcnt(0)' if cls == 'lds' else 'vmcnt(0)'))
    def mfma(self, text, needs=()):
        self.need(needs)
        self.out.append(text)
        self.clock += 1
    def mark(self):
        return len(self.out)

import re
def merge_bodies(bodies):
    def split(b):
        res = []; pend = {}
        for l in b:
            if l.startswith('s_waitcnt'):
                for k, v in re.findall(r'(\w+)\((\d+)\)', l):
                    pend[k] = min(pend.get(k, 99), int(v))
            else:
                res.append((pend, l)); pend = {}
        assert not pend
        return res
    sp = [split(b) for b in bodies]
    assert all([l for _, l in x] == [l for _, l in sp[0]] for x in sp), 'steady state mismatch'
    out = []
    for items in zip(*sp):
        w = {}
        for p, _ in items:
            for k, v in p.items():
                w[k] = min(w.get(k, 99), v)
        if w:
            out.append('s_waitcnt ' + ' '.join(f'{k}({v})' for k, v in sorted(w.items(), reverse=True)))
        out.append(items[0][1])
    return out

TRANS = ('v_exp_f32', 'v_rcp_f32', 'v_log_f32', 'v_sqrt_f32', 'v_rsq_f32', 'v_sin_f32', 'v_cos_f32')
def cost_of(text):
    c = 0
    for l in text.split('\n'):
        l = l.strip()
        if not l or l.endswith(':'): continue
        c += 8 if l.startswith(TRANS) else 4
    return c

class Item:
    def __init__(self, kind, text='', tag=None):
        self.kind, self.text, self.tag = kind, text, tag
        self.cost = 0 if kind == 'gate' else 4 if kind == 'need' else cost_of(text)
    def emit(self, st):
        if self.kind == 'raw': st.raw(self.text)
        elif self.kind == 'need': st.need(self.tag)
        elif self.kind in ('lds', 'vm'): st.mem(self.kind, self.text, self.tag)
def raws(text):
    if isinstance(text, str): text = text.split('\n')
    return [Item('raw', l.strip()) for l in text if l.strip()]

class Sched:
    def __init__(self, st, budget=8):
        self.st = st; self.fill = []; self.budget = budget
    def gap(self, fixed):
        left = self.budget
        for it in fixed:
            it.emit(self.st); left -= it.cost
        while self.fill:
            it = self.fill[0]
            if it.kind == 'gate':
                if it.tag(): self.fill.pop(0); continue
                break
            if it.cost > left and not (left == self.budget and it.cost > self.budget): break
            self.fill.pop(0); it.emit(self.st); left -= it.cost
    def flush(self):
        while self.fill:
            it = self.fill.pop(0)
            it.emit(self.st)

def kins(MT, first_rev=False):
    ms = list(range(MT))
    if first_rev: ms.reverse()
    out = []
    for n, m in enumerate(ms):
        out += [(m, k) for k in ((0, 1) if n % 2 == 0 else (1, 0))]
    return out
```

```python
import sys
from asmgen import *

NAME = 'parallel_sum__ssm_conv_s5__swiglu_ffn__prompt_kernel'
XN_OFF = 0
XS = 33 * 4096
H_OFF = 5 << 20
HQ = 45 * 4096
AGG_OFF = 28 << 20
HF_OFF = AGG_OFF + 65536
XF_OFF = AGG_OFF + 131072
LF_OFF = AGG_OFF + 196608
PART_OFF = 32 << 20
T_OFF = 64 << 20
WS_BYTES = 0x10000000
SPIN_MAX = 200000
MFMA = 'v_mfma_f32_16x16x32_bf16'
STG, UP_OFF, SSM_OFF = 37120, 14464, 28928
WX_OFF = 4 * STG
LNB = 3 * STG
TRB = 131072
LDS_BYTES = 163840

def tok_of(a, rho):
    return 16 * (rho >> 2) + 4 * a + (rho & 3)

class Stamps:
    def __init__(self, on, sel=None):
        self.on = on; self.n = 0; self.names = []; self.sel = sel
    def __call__(self, name):
        if not self.on: return ''
        if name.startswith('s2_') != bool(self.sel) and name not in ('start', 'end', 'g2_go', 'g2_end'): return ''
        if name.startswith('s2_') and int(name[3:]) not in self.sel: return ''
        s = f's_mov_b32 s{84+self.n-1}, s100\n' if self.n else ''
        self.n += 1; self.names.append(name)
        assert self.n <= 16
        return s + ('s_memrealtime' if self.on == 2 else 's_memtime') + ' s[100:101]'
    def finish(self):
        if not self.on: return ''
        s = 's_waitcnt vmcnt(0)\n' + self('end') + f'\ns_waitcnt lgkmcnt(0)\ns_mov_b32 s{84+self.n-1}, s100\n'
        for i in range(16):
            s += f'v_mov_b32 v{4+i}, s{84+i}\n' if i < self.n else f'v_mov_b32 v{4+i}, 0\n'
        s += f's_lshl_b32 s70, s2, 2\ns_add_u32 s70, s70, s3\ns_lshl_b32 s70, s70, 6\ns_add_u32 s70, s70, {T_OFF}\nv_mov_b32 v2, s70\n'
        for i in range(4):
            s += f'buffer_store_dwordx4 v[{4+4*i}:{7+4*i}], v2, s[4:7], 0 offen offset:{16*i}\n'
        return s

def p2(r): return f'v[{r}:{r+1}]'
def cfma(d, x, y, c, t=None):
    t = d if t is None else t
    first = (f'v_pk_fma_f32 {p2(t)}, {p2(x)}, {p2(y)}, {p2(c)} op_sel_hi:[0,1,1]' if c is not None
             else f'v_pk_mul_f32 {p2(t)}, {p2(x)}, {p2(y)} op_sel_hi:[0,1]')
    return [first, f'v_pk_fma_f32 {p2(d)}, {p2(x)}, {p2(y)}, {p2(t)} op_sel:[1,1,0] op_sel_hi:[1,0,1] neg_lo:[1,0,0]']
def ilv(*seqs):
    out = []
    for i in range(max(len(s) for s in seqs)):
        for s in seqs:
            if i < len(s): out.append(s[i])
    return out
def lines(s): return [x.strip() for x in s.split('\n') if x.strip()]
def both(f): return ilv(f(0), f(1))

def gen(stamp=0, ad1=2, ad2=3, tail=3, code_pf=True, roll=True, orient='t', ost='', lds_age=6, as_list=False,
        order='kins', p2_stage=1, sel=None, asc='sc1', nop2=False):
    sp = Stamps(stamp, sel)
    a = Asm()
    kernel_head(a, NAME)
    st = Stream(lds_age=lds_age)
    sc = Sched(st)
    R = st.raw
    V_A, V_F, V_S, V_RF, V_RS = 1, 2, 9, 11, 12
    VZ, V0_ = 28, 29
    T0, T1, T2 = 14, 15, 16
    nlab = [0]
    def spin(load, check, first=True):
        nlab[0] += 1; n = nlab[0]
        s = f's_mov_b32 s71, {SPIN_MAX}\n'
        if not first: s += f's_branch L_chk{n}\n'
        s += f'L_poll{n}:\n{load}\ns_sub_u32 s71, s71, 1\ns_waitcnt vmcnt(0)\ns_cbranch_scc1 L_go{n}\n'
        s += f'L_chk{n}:\n{check}\ns_cbranch_vccnz L_poll{n}\nL_go{n}:'
        return s
    far = []
    def check_far(load, check):
        nlab[0] += 1; n = nlab[0]
        far.append(f'L_far{n}:\ns_mov_b32 s71, {SPIN_MAX}\nL_fp{n}:\n{load}\ns_sub_u32 s71, s71, 1\ns_waitcnt vmcnt(0)\n'
                   f's_cbranch_scc1 L_back{n}\n{check}\ns_cbranch_vccnz L_fp{n}\ns_branch L_back{n}')
        return f'{check}\ns_cbranch_vccnz L_far{n}\nL_back{n}:'

    R(f'''
    s_cmp_ge_u32 s2, 256
    s_cbranch_scc1 L_done
    s_load_dwordx2 s[20:21], s[0:1], 0
    s_load_dwordx2 s[4:5], s[0:1], 120
    s_load_dwordx4 s[72:75], s[0:1], 80
    s_load_dwordx4 s[76:79], s[0:1], 24
    s_load_dwordx2 s[44:45], s[0:1], 8
    s_load_dwordx2 s[48:49], s[0:1], 16
    s_load_dwordx2 s[52:53], s[0:1], 56
    s_load_dwordx2 s[40:41], s[0:1], 112
    s_load_dwordx2 s[24:25], s[0:1], 96
    s_load_dwordx2 s[28:29], s[0:1], 40
    s_load_dwordx2 s[32:33], s[0:1], 48
    s_load_dwordx2 s[36:37], s[0:1], 104
    s_load_dwordx2 s[80:81], s[0:1], 64
    {sp('start')}
    v_lshrrev_b32 v1, 6, v0
    v_and_b32 v0, 63, v0
    v_readfirstlane_b32 s3, v1
    v_lshlrev_b32 v{V_A}, 4, v0
    s_bfe_u32 s58, s2, 0x20001
    s_and_b32 s56, s2, 1
    s_lshl_b32 s56, s56, 2
    s_lshr_b32 s65, s2, 6
    s_add_u32 s56, s56, s65
    s_bfe_u32 s59, s2, 0x30003
    s_lshl_b32 s57, s58, 3
    s_add_u32 s57, s57, s59
    s_lshr_b32 s82, s3, 1
    s_and_b32 s83, s3, 1
    s_lshl_b32 s60, s56, 2
    s_add_u32 s61, s60, s58
    s_and_b32 s62, s59, 1
    s_lshl_b32 s63, s62, 1
    s_add_u32 s63, s63, s82
    s_lshl_b32 s63, s63, 4
    s_lshr_b32 s64, s59, 1
    s_lshl_b32 s65, s64, 2
    s_add_u32 s63, s63, s65
    s_lshl_b32 s65, s83, 1
    s_add_u32 s63, s63, s65
    s_lshl_b32 s65, s61, 6
    s_add_u32 s63, s63, s65
    s_lshl_b32 s63, s63, 11
    s_mov_b32 s22, {2048*1024*2}
    s_mov_b32 s23, 0x20000
    s_mov_b32 s6, {WS_BYTES}
    s_mov_b32 s7, 0x20000
    s_or_b32 s65, s2, s3
    s_cmp_eq_u32 s65, 0
    s_cselect_b32 s68, 0, 0x80000000
    v_lshrrev_b32 v26, 1, v0
    v_and_b32 v27, 16, v{V_A}
    v_lshl_add_u32 v26, v26, 7, v27
    v_add_u32 v26, {LF_OFF}, v26
    v_or_b32 v27, s68, v26
    v_mov_b32 v20, 0
    v_mov_b32 v21, 0
    v_mov_b32 v22, 0
    v_mov_b32 v23, 0
    s_waitcnt lgkmcnt(0)
    ''')
    st.mem('vm', 'buffer_store_dwordx4 v[20:23], v27, s[4:7], 0 offen sc1', ('CLR',))
    for k in range(4):
        st.mem('vm', f'buffer_load_dwordx4 v[{32+4*k}:{35+4*k}], v{V_A}, s[20:23], s63 offen offset:{1024*k}', ('X', k))
    if code_pf:
        R(f'''
        s_getpc_b64 s[66:67]
        L_pc:
        s_bfe_u32 s65, s2, 0x20003
        s_lshl_b32 s65, s65, 2
        s_add_u32 s65, s65, s3
        s_lshl_b32 s65, s65, 13
        v_lshl_add_u32 v{T0}, v0, 7, s65
        v_min_u32 v{T0}, L_done-L_pc, v{T0}
        ''')
        st.mem('vm', f'global_load_dword v31, v{T0}, s[66:67]')
    R(f'''
    s_mul_i32 s70, s61, {XS}
    s_lshl_b32 s65, s64, 10
    s_add_u32 s70, s70, s65
    s_lshl_b32 s65, s62, 7
    s_add_u32 s70, s70, s65
    s_lshl_b32 s65, s3, 15
    s_add_u32 s70, s70, s65
    s_add_u32 s70, s70, {XN_OFF}
    s_lshl_b32 s71, s61, 5
    s_add_u32 s71, s71, s59
    s_lshl_b32 s71, s71, 2
    s_add_u32 s71, s71, {LF_OFF}
    s_mov_b32 s42, 256
    s_mov_b32 s43, 0x20000
    s_cmp_eq_u32 s82, 0
    s_cselect_b32 s8, s72, s74
    s_cselect_b32 s9, s73, s75
    s_cselect_b32 s12, s76, s78
    s_cselect_b32 s13, s77, s79
    s_cselect_b64 s[18:19], 0, -1
    s_cmp_eq_u32 s83, 0
    s_cselect_b64 s[16:17], 0, -1
    s_mov_b32 s10, {1024*3584*2}
    s_mov_b32 s11, 0x20000
    s_mov_b32 s14, {1024*1024*2}
    s_mov_b32 s15, 0x20000
    s_mov_b32 s46, 2048
    s_mov_b32 s47, 0x20000
    s_mov_b32 s50, 2048
    s_mov_b32 s51, 0x20000
    s_mov_b32 s54, 2048
    s_mov_b32 s55, 0x20000
    s_mov_b32 s79, s71
    s_add_u32 s72, s60, s3
    s_lshl_b32 s73, s72, 2
    s_add_u32 s73, s73, s58
    s_lshl_b32 s74, s73, 7
    s_add_u32 s74, s74, {HF_OFF}
    s_lshl_b32 s75, s59, 2
    s_add_u32 s75, s75, s74
    s_lshl_b32 s76, s2, 2
    s_add_u32 s76, s76, s3
    s_lshl_b32 s77, s76, 6
    s_add_u32 s77, s77, {XF_OFF}
    s_lshl_b32 s78, s57, 3
    s_add_u32 s78, s78, 7
    s_sub_u32 s78, s78, s56
    s_lshl_b32 s78, s78, 8
    s_add_u32 s78, s78, {AGG_OFF}
    v_cmp_ne_u32 vcc, 0, v0
    v_mov_b32 v{V0_}, 0
    v_mov_b32 v24, -1
    v_bfrev_b32 v25, 1
    v_cndmask_b32 v{VZ}, 0, v25, vcc
    v_lshlrev_b32 v25, 2, v0
    v_and_b32 v27, 15, v0
    v_lshlrev_b32 v27, 1, v27
    s_lshl_b32 s65, s57, 6
    ''')
    for pj in range(2):
        for i, srd in enumerate((44, 48, 52)):
            st.mem('vm', f'buffer_load_ushort v{96+pj*4+i}, v27, s[{srd}:{srd+3}], s65 offen offset:{32*pj}', ('P', pj, i))
    st.mem('vm', f'buffer_store_dword v20, v{VZ}, s[4:7], s75 offen sc1')
    st.mem('vm', f'buffer_store_dwordx4 v[20:23], v{VZ}, s[4:7], s77 offen sc1')
    st.mem('vm', f'buffer_store_dword v24, v25, s[4:7], s78 offen sc1')
    R('s_lshl_b32 s65, s62, 1')
    for i in range(7):
        R(f'''
        v_add_u32 v{T0}, {64*i}, v0
        v_mul_u32_u24 v{T1}, 4682, v{T0}
        v_lshrrev_b32 v{T1}, 16, v{T1}
        v_mad_i32_i24 v{T0}, v{T1}, -14, v{T0}
        v_add_u32 v{T0}, s65, v{T0}
        v_subrev_u32 v{T2}, 14, v{T0}
        v_min_u32 v{T0}, v{T0}, v{T2}
        v_lshrrev_b32 v{T2}, 1, v{T1}
        v_xor_b32 v{T2}, v{T2}, v{T1}
        v_and_b32 v{T2}, 4, v{T2}
        v_mul_u32_u24 v{T2}, 3, v{T2}
        v_xor_b32 v{T1}, v{T1}, v{T2}
        v_mul_u32_u24 v{T1}, 7168, v{T1}
        v_lshl_add_u32 v{V_F+i}, v{T0}, 4, v{T1}
        ''')
        if i % 4:
            R(f'v_subrev_u32 v{V_F+i}, {1024*(i%4)}, v{V_F+i}')
    R(f'''
    v_lshrrev_b32 v{T0}, 3, v0
    v_lshrrev_b32 v{T1}, 4, v0
    v_and_b32 v{T2}, 7, v0
    v_xor_b32 v{T1}, v{T1}, v{T2}
    v_lshlrev_b32 v{T0}, 11, v{T0}
    v_lshl_add_u32 v{V_S}, v{T1}, 4, v{T0}
    v_xor_b32 v{V_S+1}, 64, v{V_S}
    v_add_u32 v{V_S+1}, {8*2048-1024}, v{V_S+1}
    s_mul_i32 s60, s72, {XS}
    s_add_u32 s60, s60, {XN_OFF}
    s_mul_i32 s61, s57, 224
    s_mul_i32 s65, s83, {32*7168}
    s_add_u32 s61, s61, s65
    s_lshl_b32 s62, s57, 1
    s_add_u32 s62, s62, s83
    s_lshl_b32 s62, s62, 15
    s_mul_i32 s63, s82, {UP_OFF}
    s_mul_i32 s65, s83, 7168
    s_add_u32 s63, s63, s65
    s_lshl_b32 s64, s3, 11
    s_add_u32 s64, s64, {SSM_OFF}
    ''')
    NST = 16
    def accn(t): return ('v', 32 + t * 4) if t < 56 else ('a', (t - 56) * 4)
    def acc1(j, m): p, b = accn(j * 4 + m); return vr(b, 4, p)
    def aring(stage, k, m): return ar(128 + (stage % 4) * 32 + (k * 4 + m) * 4, 4)
    def bfr(g, k, off=0, n=4): return ar(64 + (g % 3) * 8 + k * 4 + off, n)
    A_STASH = 88
    def dmaB(stage):
        ops = []
        if stage >= NST: return ops
        b = (stage % 4) * STG
        for i in range(7):
            pre = f's_add_u32 m0, s63, {b + (i//4)*4096}' if i % 4 == 0 else None
            post = f's_add_u32 s61, s61, {64*7168}' if i == 6 else None
            ops.append((pre, f'buffer_load_dwordx4 v{V_F+i}, s[8:11], s61 offen offset:{1024*(i%4)} lds', ('B', stage, i), post))
        for i in range(2):
            pre = f's_add_u32 m0, s64, {b}' if i == 0 else None
            post = 's_add_u32 s62, s62, 128' if i == 1 else None
            ops.append((pre, f'buffer_load_dwordx4 v{V_S+i}, s[12:15], s62 offen offset:{1024*i} lds', ('B', stage, 7 + i), post))
        return ops
    def ldA(stage, nst, dst, key):
        ops = []
        if stage >= nst: return ops
        for k in range(2):
            for m in range(4):
                post = 's_add_u32 s60, s60, 4096' if m == 3 else None
                ops.append((None, f'buffer_load_dwordx4 {dst(stage, k, m)}, v{V_A}, s[4:7], s60 offen offset:{1024*m} {asc}', (key, stage, k * 4 + m), post))
        return ops
    def emit_vm(op):
        pre, text, tag, post = op
        if pre: R(pre); R('s_nop 0')
        st.mem('vm', text, tag)
        if post: R(post)
    R(f'v_or_b32 v17, s68, v{VZ}\nv_mov_b32 v27, 1')
    st.need([('CLR',)])
    st.mem('vm', 'buffer_store_dword v27, v17, s[40:43], 0 offen sc1')
    for op in dmaB(0): emit_vm(op)
    R(sp('issued'))
    st.need([('X', 3)])
    def ln_a(r):
        raw, f, s = 32 + 8 * r, 48 + 16 * r, 80 + 8 * r
        o = []
        for i in range(8):
            o += [f'v_lshlrev_b32 v{f+2*i}, 16, v{raw+i}', f'v_and_b32 v{f+2*i+1}, 0xffff0000, v{raw+i}']
        o += [f'v_pk_add_f32 {p2(raw+2*i)}, {p2(f+4*i)}, {p2(f+4*i+2)}' for i in range(4)]
        o += [f'v_pk_add_f32 {p2(raw)}, {p2(raw)}, {p2(raw+2)}', f'v_pk_add_f32 {p2(raw+4)}, {p2(raw+4)}, {p2(raw+6)}',
              f'v_pk_add_f32 {p2(raw)}, {p2(raw)}, {p2(raw+4)}', f'v_add_f32 v{s}, v{raw}, v{raw+1}']
        return o
    def wave_sum(off):
        v = [80 + off, 88 + off]; t = [86, 94]
        for dpp in ('quad_perm:[1,0,3,2]', 'quad_perm:[2,3,0,1]', 'row_ror:4', 'row_ror:8'):
            R('s_nop 0')
            for r in range(2): R(f'v_add_f32_dpp v{v[r]}, v{v[r]}, v{v[r]} {dpp} row_mask:0xf bank_mask:0xf')
        for sw in ('v_permlane16_swap_b32', 'v_permlane32_swap_b32'):
            for r in range(2): R(f'v_mov_b32 v{t[r]}, v{v[r]}')
            R('s_nop 0')
            R(f'{sw} v{v[0]}, v{t[0]}\n{sw} v{v[1]}, v{t[1]}')
            for r in range(2): R(f'v_add_f32 v{v[r]}, v{v[r]}, v{t[r]}')
    def ln_b(r):
        raw, f, s = 32 + 8 * r, 48 + 16 * r, 80 + 8 * r
        o = [f'v_mul_f32 v{s}, 0x3a800000, v{s}']
        for i in range(8):
            t = raw + 2 * (i % 2); ac = raw + 4 + 2 * (i % 2)
            o += [f'v_pk_add_f32 {p2(t)}, {p2(f+2*i)}, {p2(s)} op_sel_hi:[1,0] neg_lo:[0,1] neg_hi:[0,1]']
            o += [f'v_pk_mul_f32 {p2(ac)}, {p2(t)}, {p2(t)}' if i < 2 else f'v_pk_fma_f32 {p2(ac)}, {p2(t)}, {p2(t)}, {p2(ac)}']
        o += [f'v_pk_add_f32 {p2(raw+4)}, {p2(raw+4)}, {p2(raw+6)}', f'v_add_f32 v{s+2}, v{raw+4}, v{raw+5}']
        return o
    def ln_c(r):
        raw, f, s = 32 + 8 * r, 48 + 16 * r, 80 + 8 * r
        o = lines(f'''
        v_mul_f32 v{s+2}, 0x3a800000, v{s+2}
        v_cvt_pk_bf16_f32 v{s}, v{s}, v{s+2}
        v_and_b32 v{s+2}, 0xffff0000, v{s}
        v_lshlrev_b32 v{s}, 16, v{s}
        v_add_f32 v{s+2}, 0x3727c5ac, v{s+2}
        v_cvt_pk_bf16_f32 v{s+2}, v{s+2}, v{s+2}
        v_lshlrev_b32 v{s+2}, 16, v{s+2}
        v_sqrt_f32 v{s+2}, v{s+2}
        s_nop 0
        v_cvt_pk_bf16_f32 v{s+2}, v{s+2}, v{s+2}
        v_lshlrev_b32 v{s+2}, 16, v{s+2}
        v_rcp_f32 v{s+2}, v{s+2}
        ''')
        for i in range(8):
            x = f + 2 * i
            o += [f'v_pk_add_f32 {p2(x)}, {p2(x)}, {p2(s)} op_sel_hi:[1,0] neg_lo:[0,1] neg_hi:[0,1]',
                  f'v_cvt_pk_bf16_f32 v{x+1}, v{x}, v{x+1}', f'v_lshlrev_b32 v{x}, 16, v{x+1}', f'v_and_b32 v{x+1}, 0xffff0000, v{x+1}',
                  f'v_pk_mul_f32 {p2(x)}, {p2(x)}, {p2(s+2)} op_sel_hi:[1,0]', f'v_cvt_pk_bf16_f32 v{raw+i}, v{x}, v{x+1}']
        return o
    R(f'''
    s_lshl_b32 s65, s3, 1
    v_and_b32 v{T0}, 7, v0
    v_xor_b32 v{T1}, s65, v{T0}
    v_lshlrev_b32 v{T1}, 4, v{T1}
    v_lshl_add_u32 v17, v0, 7, v{T1}
    v_add_u32 v17, {LNB}, v17
    v_xor_b32 v18, 16, v17
    v_lshrrev_b32 v{T1}, 3, v0
    v_xor_b32 v{T2}, v{T1}, v{T0}
    v_lshlrev_b32 v{T2}, 4, v{T2}
    v_lshl_add_u32 v19, v{T1}, 7, v{T2}
    s_lshl_b32 s65, s3, 12
    s_add_u32 s65, s65, {LNB}
    v_add_u32 v19, s65, v19
    v_and_b32 v{T2}, 3, v{T1}
    v_lshlrev_b32 v{T2}, 8, v{T2}
    v_lshl_add_u32 v{T2}, v{T0}, 4, v{T2}
    v_lshrrev_b32 v{T1}, 5, v0
    v_lshl_add_u32 v30, v{T1}, 12, v{T2}
    ''')
    R('\n'.join(both(ln_a))); wave_sum(0)
    R('\n'.join(both(ln_b))); wave_sum(2)
    R('\n'.join(both(ln_c)))
    for r in range(2):
        for h in range(2):
            st.mem('lds', f'ds_write_b128 v{17+r}, v[{32+8*r+4*h}:{35+8*r+4*h}] offset:{8192*h}')
    gopoll = f'buffer_load_dword v31, v{V0_}, s[40:43], 0 offen sc1'
    st.mem('vm', gopoll)
    st.drain('lds'); R('s_barrier')
    for t in range(4):
        st.mem('lds', f'ds_read_b128 v[{48+4*t}:{51+4*t}], v19 offset:{1024*t}', ('LN', t))
    for t in range(4):
        st.need([('LN', t)])
        st.mem('vm', f'buffer_store_dwordx4 v[{48+4*t}:{51+4*t}], v30, s[4:7], s70 offen sc1', ('XS', t))
        R('s_add_u32 s70, s70, 8192')
    R(sp('ln_stored'))
    for op in dmaB(1): emit_vm(op)
    R(f'''
    s_cmp_eq_u32 s3, 0
    s_cselect_b32 s65, 0, 0x80000000
    v_or_b32 v17, s65, v{VZ}
    v_and_b32 v30, 7, v0
    v_lshlrev_b32 v30, 2, v30
    v_lshrrev_b32 v{T0}, 5, v0
    v_bfe_u32 v{T1}, v0, 2, 3
    v_lshl_add_u32 v{T1}, v{T0}, 4, v{T1}
    v_mul_u32_u24 v{T1}, 224, v{T1}
    v_and_b32 v{T2}, 3, v0
    v_lshl_add_u32 v{V_RF}, v{T2}, 3, v{T1}
    v_lshrrev_b32 v{T0}, 4, v0
    v_bfe_u32 v{T1}, v0, 1, 3
    v_xor_b32 v{T1}, v{T1}, v{T0}
    v_and_b32 v{T2}, 15, v0
    v_lshlrev_b32 v{T2}, 7, v{T2}
    v_lshl_add_u32 v{V_RS}, v{T1}, 4, v{T2}
    v_xor_b32 v{V_RS+1}, 64, v{V_RS}
    v_and_b32 v{T0}, 16, v0
    v_cmp_ne_u32 s[66:67], 0, v{T0}
    v_cmp_lt_u32 s[68:69], 31, v0
    ''')
    def params(pj):
        b = 112 + 32 * pj; lre, lim, ld = 96 + pj * 4, 97 + pj * 4, 98 + pj * 4
        t = b + 16
        o = lines(f'''
        v_lshlrev_b32 v{lre}, 16, v{lre}
        v_lshlrev_b32 v{lim}, 16, v{lim}
        v_lshlrev_b32 v{ld}, 16, v{ld}
        v_mul_f32 v{ld}, 0x3fb8aa3b, v{ld}
        v_exp_f32 v{ld}, v{ld}
        v_mul_f32 v{t+4}, v{lre}, v{lre}
        v_cvt_pk_bf16_f32 v{ld}, v{ld}, v{ld}
        v_lshlrev_b32 v{ld}, 16, v{ld}
        v_mul_f32 v{t}, v{ld}, v{lre}
        v_mul_f32 v{t+1}, v{ld}, v{lim}
        v_mul_f32 v{t}, 0x3fb8aa3b, v{t}
        v_mul_f32 v{t+1}, 0.15915494, v{t+1}
        v_exp_f32 v{t}, v{t}
        v_rndne_f32 v{t+2}, v{t+1}
        v_sub_f32 v{t+1}, v{t+1}, v{t+2}
        v_cos_f32 v{t+2}, v{t+1}
        v_sin_f32 v{t+3}, v{t+1}
        v_fmac_f32 v{t+4}, v{lim}, v{lim}
        v_mul_f32 v{b}, v{t}, v{t+2}
        v_mul_f32 v{b+1}, v{t}, v{t+3}
        v_rcp_f32 v{t+4}, v{t+4}
        v_add_f32 v{t}, -1.0, v{b}
        v_add_f32 v{t+4}, v{t+4}, v{t+4}
        v_mul_f32 v{t+1}, v{t}, v{lre}
        v_mul_f32 v{t+2}, v{b+1}, v{lre}
        v_fmac_f32 v{t+1}, v{b+1}, v{lim}
        v_fma_f32 v{t+2}, -v{t}, v{lim}, v{t+2}
        v_mul_f32 v{b+2}, v{t+1}, v{t+4}
        v_mul_f32 v{b+3}, v{t+2}, v{t+4}
        ''')
        o += cfma(t, b, b, None) + cfma(t + 2, t, t, None) + cfma(t, t + 2, t + 2, None) + cfma(b + 4, t, t, None)
        for k in (4, 6, 8, 10):
            o += cfma(b + k + 2, b + k, b + k, None)
        o += [f'v_cndmask_b32 v{t}, 1.0, v{b+4}, s[66:67]', f'v_cndmask_b32 v{t+1}, 0, v{b+5}, s[66:67]',
              f'v_cndmask_b32 v{t+2}, 1.0, v{b+6}, s[68:69]', f'v_cndmask_b32 v{t+3}, 0, v{b+7}, s[68:69]']
        o += cfma(t + 4, t, t + 2, None)
        o += [f'v_cndmask_b32 v{t}, 1.0, v{b+8}, s[16:17]', f'v_cndmask_b32 v{t+1}, 0, v{b+9}, s[16:17]',
              f'v_cndmask_b32 v{t+2}, 1.0, v{b+10}, s[18:19]', f'v_cndmask_b32 v{t+3}, 0, v{b+11}, s[18:19]']
        o += cfma(t + 6, t, t + 2, None) + cfma(b + 14, t + 4, t + 6, None)
        o += [f'v_mov_b32 v{b+10}, v{t+4}', f'v_mov_b32 v{b+11}, v{t+5}']
        o += [f'v_accvgpr_write_b32 a{A_STASH+16*pj+k}, v{b+k}' for k in range(16)]
        return o
    pr = both(params)
    st.need([('P', 1, 2)])
    st.need([('XS', 3)])
    R(check_far(gopoll, 'v_cmp_ne_u32 vcc, 1, v31'))
    R('s_barrier')
    st.mem('vm', f'buffer_store_dword v27, v17, s[4:7], s79 offen sc1')
    R(sp('ln_flag'))
    R('\n'.join(pr))
    def rdB1(g):
        stage, j = divmod(g, 18)
        if stage >= NST: return []
        if j < 4:
            return [Item('lds', f'ds_read_b128 {bfr(g, k)}, v{V_RS+k} offset:{SSM_OFF + j*2048}', ('F', g, k)) for k in range(2)]
        jj = j - 4
        return [Item('lds', f'ds_read_b64_tr_b16 {bfr(g, k, 2*q, 2)}, v{V_RF} offset:{(jj&1)*UP_OFF + (32*k + 8*q)*224 + 32*(jj>>1)}',
                     ('F', g, k) if q else None) for k in range(2) for q in range(2)]
    for g in range(2):
        for it in rdB1(g): it.emit(st)
    R(f's_lshl_b32 s65, s72, 7\ns_add_u32 s65, s65, {LF_OFF}')
    R(spin(f'buffer_load_dword v31, v30, s[4:7], s65 offen sc1', 'v_cmp_ne_u32 vcc, 1, v31'))
    st.covered['vm'] = len(st.issued['vm'])
    R(sp('ln_polled'))
    for s_ in range(ad1):
        for op in ldA(s_, NST, aring, 'A'): emit_vm(op)

    def group(mf, reads, vmq, vgaps, pre0=()):
        fixed = [[] for _ in mf]
        fixed[0] += list(pre0)
        for n, it in enumerate(reads): fixed[n].append(it)
        for gp in vgaps:
            if vmq:
                pre, text, tag, post = vmq.pop(0)
                if pre: fixed[gp - 1].append(Item('raw', pre))
                fixed[gp].append(Item('vm', text, tag))
                if post: fixed[gp].append(Item('raw', post))
        for (text, needs), fx in zip(mf, fixed):
            st.mfma(text, needs)
            sc.gap(fx)
    def mk_order(j):
        if order == 'kins': return kins(4, j % 2 == 1)
        return [(m, k) for k in range(2) for m in range(4)]

    N2, NFF, PD = 22, 14, 4
    V_F2, V_RF2, V_S2, V_RS2 = 2, 6, 14, 20
    def dmaB2(stage):
        ops = []
        if stage >= N2: return ops
        for i in range(4):
            pre = f's_add_u32 m0, s63, {(stage % 8) * 16384}' if i == 0 else None
            post = None
            if stage < NFF:
                t = f'buffer_load_dwordx4 v{V_F2+i}, s[24:27], s61 offen offset:{1024*i} lds'
                if i == 3:
                    if stage == 11: post = 's_mov_b32 s61, s64'
                    elif stage == 12: post = f's_add_u32 s61, s61, {448*2048}'
                    elif stage % 4 == 3: post = f's_sub_u32 s61, s61, {(3*224-32)*2048}'
                    elif stage < 12: post = f's_add_u32 s61, s61, {224*2048}'
            else:
                comp = (stage - NFF) & 1
                if i == 3 and comp: post = 's_add_u32 s62, s62, 128'
                t = f'buffer_load_dwordx4 v{V_S2+i}, s[{28+4*comp}:{31+4*comp}], s62 offen offset:{1024*i} lds'
            ops.append((pre, t, ('B2', stage, i), post))
        return ops
    g2_setup_a = raws(f'''
    s_and_b32 s65, s56, 3
    s_xor_b32 s79, s58, s65
    s_lshl_b32 s65, s79, 2
    v_lshrrev_b32 v{T0}, 4, v0
    v_and_b32 v{T1}, 15, v0
    v_lshlrev_b32 v{T2}, 1, v{T0}
    v_xor_b32 v{T1}, v{T1}, v{T2}
    v_xor_b32 v{T1}, s65, v{T1}
    v_lshlrev_b32 v{T2}, 11, v{T0}
    v_lshl_add_u32 v{V_F2}, v{T1}, 4, v{T2}
    v_xor_b32 v{V_F2+1}, 128, v{V_F2}
    v_add_u32 v{V_F2+2}, {2*7168}, v{V_F2}
    v_add_u32 v{V_F2+3}, {3*7168}, v{V_F2+1}
    v_add_u32 v{V_F2+1}, 7168, v{V_F2+1}
    s_mul_i32 s61, s58, {896*2048}
    s_lshl_b32 s65, s83, 15
    s_add_u32 s61, s61, s65
    s_lshl_b32 s65, s59, 8
    s_add_u32 s61, s61, s65
    s_mul_i32 s64, s82, {224*2048}
    s_add_u32 s64, s64, s61
    s_add_u32 s64, s64, {96*2048}
    s_lshl_b32 s65, s82, 18
    s_add_u32 s61, s61, s65
    s_lshl_b32 s63, s3, 12
    s_xor_b32 s62, s3, s79
    s_lshl_b32 s65, s59, 2
    s_add_u32 s62, s62, s65
    s_add_u32 s79, s79, s65
    s_lshl_b32 s62, s62, 16
    s_lshl_b32 s65, s58, 9
    s_add_u32 s62, s62, s65
    s_mov_b32 s26, {3584*1024*2}
    s_mov_b32 s27, 0x20000
    s_mov_b32 s30, {1024*1024*2}
    s_mov_b32 s31, 0x20000
    s_mov_b32 s34, {1024*1024*2}
    s_mov_b32 s35, 0x20000
    s_mov_b32 s38, {2048*1024*4}
    s_mov_b32 s39, 0x20000
    s_mov_b32 s48, s80
    s_mov_b32 s49, s81
    ''')
    PAIR0 = 52
    g2_setup_b = raws(f'''
    s_mul_i32 s73, s73, {HQ}
    s_add_u32 s73, s73, {H_OFF}
    s_lshl_b32 s65, s59, 12
    s_add_u32 s54, s73, s65
    s_lshr_b32 s65, s59, 1
    s_lshl_b32 s55, s65, 12
    s_add_u32 s55, s55, s73
    s_and_b32 s70, s59, 1
    s_lshl_b32 s70, s70, 10
    s_add_u32 s55, s55, s70
    s_add_u32 s55, s55, {24*4096}
    s_lshl_b32 s65, s65, 14
    s_lshl_b32 s70, s70, 2
    s_add_u32 s80, s65, s70
    s_add_u32 s80, s80, s73
    s_add_u32 s80, s80, {28*4096}
    s_mov_b32 s52, 0xbfb8aa3b
    s_mov_b32 s53, 0xbfb8aa3b
    ''') + [Item('raw', f's_lshl_b32 s65, s57, 11\ns_add_u32 s65, s65, {AGG_OFF}\ns_add_u32 s44, s4, s65\ns_addc_u32 s45, s5, 0')]

    vmq = dmaB(2); marks = []
    emit_vm(vmq.pop(0)); emit_vm(vmq.pop(0))
    allpoll = 'buffer_load_dwordx4 v[16:19], v26, s[4:7], 0 offen sc1'
    for stage in range(NST):
        marks.append(st.mark())
        vmq += ldA(stage + ad1, NST, aring, 'A')
        for j in range(18):
            g = stage * 18 + j
            pre0 = []
            if j == 16 and stage + 1 < NST:
                sw = stage + 1
                assert not vmq, vmq
                pre0 = [Item('need', tag=[('B', sw, 8)]), Item('raw', 's_barrier')]
                d = STG if sw % 4 else -3 * STG
                pre0 += raws([f'v_add_u32 v{v}, {d & 0xffffffff:#x}, v{v}' for v in (V_RS, V_RS + 1)])
                sc.fill += raws([f'v_add_u32 v{V_RF}, {d & 0xffffffff:#x}, v{V_RF}'])
                vmq += dmaB(sw + 2)
                if sw >= 14:
                    assert len(sc.fill) == 1
                    vmq += dmaB2(2 * (sw - 14)) + dmaB2(2 * (sw - 14) + 1)
            if stage == 13 and j == 8: sc.fill += g2_setup_a
            if stage == 14 and j == 8: sc.fill += g2_setup_b
            if stage == 15 and j == 8:
                vmq.append((None, allpoll, ('ALL',), None))
            mf = []; seen = set()
            for (m, k) in mk_order(j):
                c = acc1(j, m) if (stage > 0 or m in seen) else '0'
                seen.add(m)
                af, bf = aring(stage, k, m), bfr(g, k)
                needs = [('F', g, 1), ('A', stage, 7)]
                mf.append((f'{MFMA} {acc1(j,m)}, {af}, {bf}, {c}' if j < 4 else f'{MFMA} {acc1(j,m)}, {bf}, {af}, {c}', needs))
            group(mf, rdB1(g + 2), vmq, (5,), pre0)
            if g == 0 and stamp: R(sp('g1_go'))
    marks.append(st.mark())
    assert not vmq and not sc.fill
    if roll:
        body = st.out
        b0 = merge_bodies([body[marks[i]:marks[i + 4]] for i in (1, 5, 9)])
        st.out = (body[:marks[1]] + ['s_mov_b32 s70, 3', 'L_g1_loop:'] + b0 +
                  ['s_sub_u32 s70, s70, 1', 's_cmp_lg_u32 s70, 0', 's_cbranch_scc1 L_g1_loop'] + body[marks[13]:])
    R(sp('g1_end'))

    def unstash(k, dst):
        return [f'v_accvgpr_read_b32 v{dst+2*pj+i}, a{A_STASH+16*pj+k+i}' for pj in range(2) for i in range(2)]
    def tile_regs(jj, mat, m, pre):
        p, b = accn((4 + 2 * jj + mat) * 4 + m)
        if p == 'v': return b
        d = 96 + b
        pre += [f'v_accvgpr_read_b32 v{d+i}, a{b+i}' for i in range(4)]
        return d
    def swiglu(tiles, store, tag, tmp=6):
        pre = []
        gs_ = [tile_regs(jj, 0, m, pre) for jj, m in tiles]; us = [tile_regs(jj, 1, m, pre) for jj, m in tiles]
        G = [g + i for g in gs_ for i in (0, 2)]; U = [u + i for u in us for i in (0, 2)]
        out = gs_[0]
        o = list(pre)
        o += [f'v_pk_mul_f32 {p2(tmp+2*k)}, {p2(G[k])}, s[52:53]' for k in range(4)]
        o += [f'v_exp_f32 v{tmp+k}, v{tmp+k}' for k in range(8)]
        o += [f'v_pk_mul_f32 {p2(U[k])}, {p2(G[k])}, {p2(U[k])}' for k in range(4)]
        o += [f'v_pk_add_f32 {p2(tmp+2*k)}, {p2(tmp+2*k)}, 1.0 op_sel_hi:[1,0]' for k in range(4)]
        o += [f'v_rcp_f32 v{tmp+k}, v{tmp+k}' for k in range(8)]
        o += [f'v_pk_mul_f32 {p2(U[k])}, {p2(U[k])}, {p2(tmp+2*k)}' for k in range(4)]
        o += [f'v_cvt_pk_bf16_f32 v{out+k}, v{U[k]}, v{U[k]+1}' for k in range(4)]
        return raws(o) + [Item('vm', f'buffer_store_dwordx4 v[{out}:{out+3}], v{V_A}, s[4:7], {store} sc1', tag)]
    def block(b):
        o = []
        if b < 3:
            for m in range(4):
                o += swiglu([(2 * b, m), (2 * b + 1, m)], f's54 offen offset:{1024*m}', ('H', b, m))
            o += raws(f's_add_u32 s54, s54, {8*4096}')
        else:
            for h in range(2):
                o += swiglu([(6, 2 * h), (6, 2 * h + 1)], f's55 offen offset:{2048*h}', ('H', 3, 2 + h))
        return o
    def hflag(val, tag):
        return [Item('raw', f'v_mov_b32 v19, {val}'), Item('need', tag=[tag]),
                Item('vm', f'buffer_store_dword v19, v{VZ}, s[4:7], s75 offen sc1')]
    def run(items, vq=None, every=16):
        for n, it in enumerate(items):
            it.emit(st)
            if vq and n % every == every - 1: emit_vm(vq.pop(0))
    run(block(0))
    st.need([('ALL',)])
    R(check_far(allpoll, 'v_and_b32 v16, v16, v17\nv_and_b32 v18, v18, v19\nv_and_b32 v16, v16, v18\nv_cmp_ne_u32 vcc, 1, v16'))
    R(sp('b0'))
    LAM, LP = 20, 24
    SS, TA, TB, HH, TC, K1, K2 = 112, 116, 120, 124, 144, 148, 152
    def upair(pj, i): return (32 if i % 2 == 0 else 64) + pj * 16 + (i & ~1)
    R('\n'.join(unstash(0, LAM) + unstash(2, SS)))
    def scale(pj, i):
        Rr, I = 32 + pj * 16 + i, 64 + pj * 16 + i; s = SS + 2 * pj; ta, tb = TA + 2 * pj, TB + 2 * pj
        return [f'v_pk_mul_f32 {p2(ta)}, {p2(Rr)}, {p2(s)} op_sel_hi:[0,1]',
                f'v_pk_mul_f32 {p2(tb)}, {p2(Rr)}, {p2(s)} op_sel:[1,0]',
                f'v_pk_fma_f32 {p2(Rr)}, {p2(I)}, {p2(s)}, {p2(ta)} op_sel:[0,1,0] op_sel_hi:[0,0,1] neg_lo:[1,0,0]',
                f'v_pk_fma_f32 {p2(I)}, {p2(I)}, {p2(s)}, {p2(tb)} op_sel:[1,1,0] op_sel_hi:[1,0,1] neg_lo:[1,0,0]']
    def chain(pj):
        o = []
        for i in range(1, 16):
            o += cfma(HH + 2 * pj, LAM + 2 * pj, HH + 2 * pj if i > 1 else upair(pj, 0), upair(pj, i), TC + 2 * pj)
        return o
    scl = [sum((scale(pj, i) for i in range(0, 16, 2)), []) for pj in range(2)]
    ch = [chain(pj) for pj in range(2)]
    R('\n'.join(ilv(scl[0][:4], scl[1][:4]) + ilv(scl[0][4:], ch[0][:2], scl[1][4:], ch[1][:2])[:12] +
                ilv(scl[0][8:], ch[0][2:], scl[1][8:], ch[1][2:])))
    def cf2(d, x, y, c): return both(lambda pj: cfma(d + 2 * pj, x + 2 * pj, y + 2 * pj, c + 2 * pj))
    EA, EB = LP, TB
    R(f'v_mov_b64 {p2(EA)}, {p2(HH)}\nv_mov_b64 {p2(EA+2)}, {p2(HH+2)}')
    R('\n'.join(unstash(4, K1) + unstash(6, K2)))
    for c in range(4): R(f'v_permlane16_swap_b32 v{EA+c}, v{HH+c}')
    R('\n'.join(cf2(HH, K1, EA, HH)))
    R(f'''
    v_mov_b64 {p2(EB)}, {p2(HH)}
    v_mov_b64 {p2(EB+2)}, {p2(HH+2)}
    v_lshlrev_b32 v27, 4, v0
    s_lshl_b32 s65, s3, 8
    ''' .replace('v27', 'v18'))
    for c in range(4): R(f'v_permlane32_swap_b32 v{EB+c}, v{HH+c}')
    R(f'v_and_b32 v17, 0xf0, v18\nv_add_u32 v16, {WX_OFF}, v17\nv_add_u32 v15, s65, v16')
    R('\n'.join(cf2(HH, K2, EB, HH)))
    st.mem('lds', f'ds_write_b128 v15, v[{HH}:{HH+3}]')
    for c in range(4): R(f'v_cndmask_b32 v{EB+c}, 0, v{EB+c}, s[68:69]')
    R('\n'.join(cf2(EA, K1, EB, EA)))
    for c in range(4): R(f'v_cndmask_b32 v{EA+c}, v{EB+c}, v{EA+c}, s[66:67]')
    R('\n'.join(unstash(8, K1) + unstash(10, K2)))
    st.need([('B2', 3, 3)])
    st.drain('lds'); R('s_barrier')
    W = 128
    for w in range(4):
        st.mem('lds', f'ds_read_b128 v[{W+4*w}:{W+4*w+3}], v16 offset:{256*w}', ('W', w))
    R(f'''
    s_sub_u32 s65, 7, s56
    s_lshl_b32 s65, s65, 8
    v_add_u32 v17, s65, v17
    v_and_b32 v18, 0x300, v18
    v_lshl_add_u32 v18, v18, 3, v17
    ''')
    run(hflag(1, ('H', 0, 3)))
    for w in range(1, 4):
        st.need([('W', w)])
        R('\n'.join(cf2(W + 4 * w, K1, W + 4 * w - 4, W + 4 * w)))
    for c in range(4): R(f'v_and_b32 v{W+12+c}, -2, v{W+12+c}')
    st.mem('vm', f'buffer_store_dwordx4 v[{W+12}:{W+15}], v18, s[44:47], 0 offen sc1')
    for c in range(4):
        R(f'v_cndmask_b32 v{W+c}, 0, v{W+c}, s[16:17]\nv_cndmask_b32 v{W+4+c}, v{W+4+c}, v{W+8+c}, s[16:17]')
    for c in range(4): R(f'v_cndmask_b32 v{W+c}, v{W+c}, v{W+4+c}, s[18:19]')
    R('\n'.join(cf2(LP, K2, W, LP)))
    R(sp('scan1'))
    hpoll = 'buffer_load_dword v31, v30, s[4:7], s74 offen sc1'
    def hcheck(val): return check_far(hpoll, f'v_cmp_gt_u32 vcc, {val}, v31')
    b1 = block(1)
    run(b1[:len(b1) // 2])
    st.mem('vm', hpoll, ('HP', 1))
    run(b1[len(b1) // 2:])
    st.need([('HP', 1)])
    R(hcheck(1))
    R(sp('b1'))
    def a2dst(stage, k, m):
        if stage in (12, 13): return vr(32 + (stage - 12) * 32 + (k * 4 + m) * 4, 4)
        return aring(stage, k, m)
    R('s_mov_b32 s60, s73')
    aq = []
    for s_ in range(2): aq += ldA(s_, N2, a2dst, 'A2')
    run(block(2), aq, 12)
    run(hflag(2, ('H', 1, 3)))
    run(block(3), aq, 12)
    while aq: emit_vm(aq.pop(0))
    R(f'''
    v_lshrrev_b32 v{T1}, 2, v0
    v_and_b32 v{T2}, 7, v{T1}
    v_lshlrev_b32 v{T1}, 8, v{T1}
    v_lshl_add_u32 v{T1}, v{T2}, 5, v{T1}
    v_and_b32 v{T2}, 3, v0
    v_lshl_add_u32 v{V_RF2}, v{T2}, 3, v{T1}
    ''')
    R('\n'.join(f'v_xor_b32 v{V_RF2+j}, {32*j}, v{V_RF2}' for j in range(1, 8)))

    T_ = N2 - tail
    seq = [(s_, j) for s_ in range(T_) for j in range(8)]
    seq += [(s_, j) for pc in (1, 2, 3, 0) for s_ in range(T_, N2) for j in (2 * pc, 2 * pc + 1)]
    G0 = 3 * 1000
    def rdB2(n):
        if n >= len(seq): return []
        stage, j = seq[n]; g = G0 + n
        b = (stage % 4) * 16384
        if stage >= NFF:
            hi = 2 * ((stage % 8) // 4)
            return [Item('lds', f'ds_read_b128 {bfr(g, k)}, v{V_RS2+hi+k} offset:{b + j*2048}', ('F', g, k)) for k in range(2)]
        return [Item('lds', f'ds_read_b64_tr_b16 {bfr(g, k, 2*q, 2)}, v{V_RF2+j} offset:{b + (32*k + 16*q)*256}',
                     ('F', g, k) if q else None) for k in range(2) for q in range(2)]
    for n in range(2):
        for it in rdB2(n): it.emit(st)
    R(sp('g2_go'))
    VACC = 96
    def accb(j, m): return VACC + (j * 4 + m) * 4
    def acc2(j, m): return vr(accb(j, m), 4)
    def mf2(j, m, af, bf, c):
        return f'{MFMA} {acc2(j,m)}, {af}, {bf}, {c}' if orient == 't' else f'{MFMA} {acc2(j,m)}, {bf}, {af}, {c}'
    def after(nm):
        t0 = [None]
        def f():
            if t0[0] is None: t0[0] = st.clock
            return st.clock >= t0[0] + nm
        return Item('gate', tag=f)
    AG, KC, PK = 224, 252, 224
    aggld = [f'buffer_load_dwordx4 v[{AG-4+4*i}:{AG-1+4*i}], v17, s[44:47], 0 offen offset:{256*i} sc1' for i in range(1, 8)]
    aggck = [f'v_or3_b32 v19, v{AG}, v{AG+1}, v{AG+2}'] + [f'v_or3_b32 v19, v19, v{r}, v{r+1}' for r in range(AG + 3, AG + 27, 2)]
    aggck += [f'v_or_b32 v19, v19, v{AG+27}', 'v_and_b32 v19, 1, v19']
    p2f = []
    for i, t in enumerate(aggld): p2f += [Item('vm', t, ('AG', i)), after(4)]
    p2f += raws(unstash(12, KC)) + [after(48), Item('need', tag=[('AG', 6)])] + raws(aggck)
    nlab[0] += 1; n_ = nlab[0]
    far.append(f'L_far{n_}:\ns_mov_b32 s71, {SPIN_MAX}\nL_fp{n_}:\n' + '\n'.join(aggld) +
               f'\ns_sub_u32 s71, s71, 1\ns_waitcnt vmcnt(0)\ns_cbranch_scc1 L_back{n_}\n' + '\n'.join(aggck) +
               f'\nv_cmp_ne_u32 vcc, 0, v19\ns_cbranch_vccnz L_fp{n_}\ns_branch L_back{n_}')
    p2f += [Item('raw', f'v_cmp_ne_u32 vcc, 0, v19\ns_cbranch_vccnz L_far{n_}\nL_back{n_}:')]
    for i in range(6, 0, -1): p2f += raws(cf2(AG - 4 + 4 * i, KC, AG + 4 * i, AG - 4 + 4 * i))
    p2f += raws(unstash(14, KC) + cf2(LP, KC, AG, LP))
    def pass2(pj):
        o = []
        for i in range(16):
            o += cfma(upair(pj, i), LAM + 2 * pj, upair(pj, i - 1) if i else LP + 2 * pj, upair(pj, i))
            if i % 2 == 1:
                e, od = upair(pj, i - 1), upair(pj, i)
                o += [f'v_cvt_pk_bf16_f32 v{PK+pj*8+i//2}, v{e}, v{od}', f'v_cvt_pk_bf16_f32 v{PK+16+pj*8+i//2}, -v{e+1}, -v{od+1}']
        return o
    p2f += raws(both(pass2))
    p2f += raws(f'''
    s_lshl_b32 s65, s3, 13
    s_add_u32 s65, s65, {TRB}
    v_and_b32 v14, 15, v0
    v_mul_u32_u24 v14, 144, v14
    v_lshrrev_b32 v16, 4, v0
    v_lshl_add_u32 v14, v16, 5, v14
    v_add_u32 v14, s65, v14
    v_bfe_u32 v15, v0, 2, 2
    v_lshl_add_u32 v15, v16, 3, v15
    v_mul_u32_u24 v15, 144, v15
    v_and_b32 v16, 3, v0
    v_lshl_add_u32 v15, v16, 5, v15
    v_add_u32 v15, s65, v15
    ''')
    for comp in range(2):
        for pj in range(2):
            for h in range(2):
                r = PK + comp * 16 + pj * 8 + 4 * h
                p2f += [Item('lds', f'ds_write_b128 v14, v[{r}:{r+3}] offset:{pj*16*144 + 16*h}'), after(2)]
        for m in range(4):
            for q in range(2):
                r = 32 + (comp * 4 + m) * 4 + 2 * q
                p2f.append(Item('lds', f'ds_read_b64_tr_b16 v[{r}:{r+1}], v15 offset:{q*4*144 + m*8}', ('TR', comp, m, q)))
    p2f += [after(8), Item('need', tag=[('TR', 1, 3, 1)])]
    for comp in range(2):
        for m in range(4):
            r = 32 + (comp * 4 + m) * 4
            p2f += [Item('vm', f'buffer_store_dwordx4 v[{r}:{r+3}], v{V_A}, s[4:7], s80 offen offset:{1024*m} sc1', ('H', 4, comp * 4 + m)), after(4)]
        p2f += raws('s_add_u32 s80, s80, 8192')
    p2f += raws(f'''
    v_lshrrev_b32 v18, 4, v0
    v_lshrrev_b32 v19, 3, v0
    v_and_b32 v24, 7, v0
    v_xor_b32 v24, v24, v18
    v_lshlrev_b32 v19, 11, v19
    v_lshl_add_u32 v{V_S2}, v24, 4, v19
    v_xor_b32 v{V_S2+1}, 64, v{V_S2}
    v_add_u32 v{V_S2+2}, {2*15360}, v{V_S2}
    v_add_u32 v{V_S2+3}, {3*15360}, v{V_S2+1}
    v_add_u32 v{V_S2+1}, 15360, v{V_S2+1}
    v_bfe_u32 v19, v0, 1, 3
    v_xor_b32 v19, v19, v18
    v_and_b32 v24, 15, v0
    v_lshlrev_b32 v27, 1, v24
    v_lshlrev_b32 v24, 7, v24
    v_lshl_add_u32 v{V_RS2}, v19, 4, v24
    v_xor_b32 v{V_RS2+1}, 64, v{V_RS2}
    v_xor_b32 v{V_RS2+2}, 0x10000, v{V_RS2}
    v_xor_b32 v{V_RS2+3}, 0x10000, v{V_RS2+1}
    v_bfe_u32 v19, v0, 2, 2
    v_lshlrev_b32 v19, 4, v19
    v_and_b32 v24, 3, v0
    v_add_u32 v25, v19, v24
    v_lshlrev_b32 v19, 11, v25
    v_lshl_add_u32 v26, v18, 4, v19
    s_lshl_b32 s54, s79, 6
    s_lshl_b32 s55, s72, 17
    s_add_u32 s55, s55, s54
    s_mul_i32 s81, s72, {XS}
    s_lshl_b32 s65, s79, 12
    s_add_u32 s81, s81, s65
    s_add_u32 s81, s81, {XN_OFF}
    ''') + [after(40)] + hflag(4, ('H', 4, 7))
    extra = []
    for m in range(4):
        extra.append((None, f'buffer_load_dwordx4 {ar(4*m,4)}, v26, s[20:23], s55 offen', ('E', m), f's_add_u32 s55, s55, {4*2048}'))
        extra.append((None, f'buffer_load_dwordx4 {ar(16+4*m,4)}, v{V_A}, s[4:7], s81 offen offset:{1024*m} sc1', ('E', 4 + m), None))
    for j in range(2):
        extra.append((None, f'buffer_load_ushort v{224+j}, v27, s[48:51], s54 offen offset:{32*j}', ('E', 8 + j), None))
    DI, DD = 232, 240
    diag = [Item('need', tag=[('E', 9)])] + raws(f'''
    v_bfe_u32 v226, v0, 1, 3
    v_lshlrev_b32 v227, 2, v18
    v_sub_u32 v226, v227, v226
    v_and_b32 v227, 1, v0
    v_lshlrev_b32 v227, 4, v227
    v_lshlrev_b32 v224, v227, v224
    v_lshlrev_b32 v225, v227, v225
    v_mov_b32 v228, 0x3f80
    v_lshlrev_b32 v228, v227, v228
    ''')
    for j in range(2):
        for w in range(4):
            diag += raws([f'v_cmp_eq_i32 vcc, {8*j - w}, v226', 's_nop 1', f'v_cndmask_b32 v{DI+4*j+w}, 0, v228, vcc', f'v_cndmask_b32 v{DD+4*j+w}, 0, v{224+j}, vcc'])
    if orient == 't':
        diag += raws('v_lshlrev_b32 v19, 16, v18\nv_lshl_add_u32 v24, v27, 1, v19')
    else:
        diag += raws('v_lshlrev_b32 v19, 12, v25\nv_lshl_add_u32 v24, v18, 4, v19')
    diag += raws('s_lshl_b32 s54, s72, 18\ns_lshl_b32 s65, s79, 7\ns_add_u32 s54, s54, s65\nv_mov_b32 v19, 1')
    def publish(d):
        o = [after(3)] + raws([f's_xor_b32 s55, s76, {d << 3}', 's_lshl_b32 s55, s55, 12', f's_add_u32 s55, s55, {PART_OFF + (d << 22)}'])
        for k in range(4):
            q = 32 + ((d - 1) * 4 + k) * 4; b = accb(2 * d, 0) + 8 * k
            o += raws([f'v_cvt_pk_bf16_f32 v{q+i}, v{b+2*i}, v{b+2*i+1}' for i in range(4)])
            o.append(Item('vm', f'buffer_store_dwordx4 v[{q}:{q+3}], v{V_A}, s[4:7], s55 offen offset:{1024*k} sc1', ('PS', d, k)))
        return o
    def xflag(d):
        return raws([f's_xor_b32 s65, s77, {d << 9}']) + [Item('need', tag=[('PS', d, 3)]),
                Item('vm', f'buffer_store_dword v19, v{VZ}, s[4:7], s65 offen offset:{4*d} sc1')]
    checks = {4 - ad2: 2, 8 - ad2: 3, 14 - ad2: 4}
    vmq = []
    for s_ in range(2, ad2): vmq += ldA(s_, N2, a2dst, 'A2')
    vmq += dmaB2(PD)
    switched = set(range(4)); started = set(); inited = set()
    for n, (stage, j) in enumerate(seq):
        g = G0 + n
        pre0 = []
        if stage not in started:
            started.add(stage)
            R(sp(f's2_{stage}'))
            if stage in checks:
                pre0 += [Item('need', tag=[('HP', checks[stage])]), Item('raw', hcheck(checks[stage]))]
            if stage + ad2 in (12, 13): assert not [x for x in sc.fill if x.kind == 'vm' and x.tag and x.tag[0] == 'H']
            vmq += ldA(stage + ad2, N2, a2dst, 'A2')
            if stage + 1 in checks: vmq.insert(0, (None, hpoll, ('HP', checks[stage + 1]), None))
            if stage == 1: sc.fill += hflag(3, ('H', 3, 3))
            if stage == p2_stage: sc.fill += p2f
            if 12 <= stage < 17: vmq += [extra.pop(0), extra.pop(0)]
            if stage == 18: sc.fill += diag
        if n + 2 < len(seq):
            ns, nj = seq[n + 2]
            if nj == 0 and ns < T_ or (ns == T_ and ns not in started and nj == 2):
                last = ns if ns < T_ else N2 - 1
                pre0 += [Item('need', tag=[('B2', last, 3)]), Item('raw', 's_barrier')]
                if ns + PD == NFF: assert not sc.fill, len(sc.fill)
                vmq += dmaB2(ns + PD)
            if ns < NFF and ns % 4 == 0 and ns > 0:
                pre0 += raws(f'v_xor_b32 v{V_RF2+nj}, 0x10000, v{V_RF2+nj}')
        if stage in (11, 12) and j == 5:
            b = 32 + (stage - 11) * 32
            sc.fill += [Item('need', tag=[('A2', stage + 1, 7)])] + raws([f'v_swap_b32 v{b+8*h+2+c}, v{b+8*h+4+c}' for h in range(4) for c in range(2)])
        if stage in (12, 13) and j == 0: assert not sc.fill
        mf = []
        for (m, k) in mk_order(n):
            c = acc2(j, m) if (j, m) in inited else '0'
            inited.add((j, m))
            mf.append((mf2(j, m, a2dst(stage, k, m), bfr(g, k), c), [('F', g, 1), ('A2', stage, 7)]))
        group(mf, rdB2(n + 2), vmq, (4, 6), pre0)
        if stage == N2 - 1 and j % 2 == 1 and j > 1:
            d = j // 2
            sc.fill += publish(d)
            if d == 3: sc.fill += xflag(1)
        if stamp and (stage, j) == (T_ - 1, 7): R(sp('tail'))
    assert not vmq and not extra
    for (dg, xb) in ((DI, 0), (DD, 16)):
        group([(mf2(j, m, ar(xb + 4 * m, 4), vr(dg + 4 * j, 4), acc2(j, m)), []) for j in range(2) for m in range(4)], [], [], ())
    sc.flush()
    R(sp('g2_end'))
    run(xflag(2))
    xpoll = f'buffer_load_dwordx4 v[248:251], v{V0_}, s[4:7], s77 offen sc1'
    st.mem('vm', xpoll, ('XP', 0))
    run(xflag(3))
    st.need([('XP', 0)])
    R(check_far(xpoll, 'v_and_b32 v248, v249, v250\nv_cmp_ne_u32 vcc, 1, v248'))
    R(sp('polled12'))
    R(f's_lshl_b32 s55, s76, 12\ns_add_u32 s55, s55, {PART_OFF}')
    RB = 128
    def rdpart(d):
        R(f's_add_u32 s55, s55, {1<<22}')
        for k in range(4):
            r = RB + ((d - 1) * 4 + k) * 4
            st.mem('vm', f'buffer_load_dwordx4 v[{r}:{r+3}], v{V_A}, s[4:7], s55 offen offset:{1024*k} sc1', ('R', d, k))
    def addpart(d, k):
        st.need([('R', d, k)])
        r = RB + ((d - 1) * 4 + k) * 4
        for i in range(4):
            R(f'v_lshlrev_b32 v{176+2*i}, 16, v{r+i}\nv_and_b32 v{177+2*i}, 0xffff0000, v{r+i}')
        for i in range(4):
            b = VACC + 8 * k + 2 * i
            R(f'v_pk_add_f32 {p2(b)}, {p2(b)}, {p2(176+2*i)}')
    rdpart(1); rdpart(2)
    R(check_far(xpoll, 'v_cmp_ne_u32 vcc, 1, v251'))
    rdpart(3)
    for d in (1, 2):
        for k in range(4): addpart(d, k)
    for k in (0, 2, 1, 3):
        addpart(3, k)
        if k >= 2:
            for m in (2 * (k - 2), 2 * (k - 2) + 1):
                if orient == 't':
                    for r in range(4):
                        for j in range(2):
                            st.mem('vm', f'buffer_store_dword v{accb(j,m)+r}, v24, s[36:39], s54 offen offset:{64*j} {ost}')
                        R('s_add_u32 s54, s54, 4096')
                else:
                    for j in range(2):
                        st.mem('vm', f'buffer_store_dwordx4 {acc2(j,m)}, v24, s[36:39], s54 offen offset:{64*j} {ost}')
                    R('s_add_u32 s54, s54, 16384')
    R(sp.finish())
    R('s_endpgm')
    for f in far: R(f)
    R('L_done:\ns_endpgm')
    a('\n'.join(st.out))
    hdr = '; Fused LayerNorm -> GEMM1 (B-projection + scan, gate/up + SwiGLU) -> GEMM2 (C-projection + down, split-K 4)\n'
    hdr += (f'; @launch kernel={NAME} grid=(256,1,1) block=(256,1,1) lds={LDS_BYTES}\n' if as_list
            else f'; @launch grid=(256,1,1) block=(256,1,1) lds={LDS_BYTES}\n')
    hdr += '.amdgcn_target "amdgcn-amd-amdhsa--gfx950"\n'
    gen.names = sp.names
    return hdr + a.text() + kernel_desc(NAME, 512, 256)

if __name__ == '__main__':
    kw = eval('dict(%s)' % (sys.argv[2] if len(sys.argv) > 2 else ''))
    open(sys.argv[1], 'w').write(gen(**kw))
```

```python
class Asm:
    def __init__(self):
        self.lines = []
    def __call__(self, s):
        for l in s.split('\n'):
            l = l.strip()
            if l:
                self.lines.append(l if l.endswith(':') or l.startswith('.') else '    ' + l)
    def text(self):
        return '\n'.join(self.lines) + '\n'

def kernel_head(a, name):
    a(f'.text\n.globl {name}\n.p2align 8\n.type {name},@function\n{name}:')

def kernel_desc(name, vgpr, accum, sgpr=102):
    return (f'.section .rodata,"a"\n.p2align 6\n.amdhsa_kernel {name}\n'
            f'  .amdhsa_next_free_vgpr {vgpr}\n  .amdhsa_next_free_sgpr {sgpr}\n'
            f'  .amdhsa_accum_offset {accum}\n  .amdhsa_group_segment_fixed_size 0\n'
            f'  .amdhsa_kernarg_size 128\n  .amdhsa_user_sgpr_count 2\n'
            f'  .amdhsa_user_sgpr_kernarg_segment_ptr 1\n  .amdhsa_system_sgpr_workgroup_id_x 1\n'
            f'  .amdhsa_float_denorm_mode_32 3\n'
            f'.end_amdhsa_kernel\n')

def vr(b, n=1, p='v'):
    return f'{p}{b}' if n == 1 else f'{p}[{b}:{b+n-1}]'
def ar(b, n=1):
    return vr(b, n, 'a')
def sr(b, n=1):
    return vr(b, n, 's')

class Stream:
    def __init__(self, lds_age=3, vm_age=10**9):
        self.out = []
        self.issued = {'lds': [], 'vm': []}
        self.index = {}
        self.covered = {'lds': 0, 'vm': 0}
        self.age = {'lds': lds_age, 'vm': vm_age}
        self.clock = 0
    def raw(self, text):
        for l in text.split('\n'):
            l = l.strip()
            if l:
                self.out.append(l)
    def need(self, tags):
        w = {}
        for t in tags:
            cls, idx = self.index[t]
            if idx >= self.covered[cls]:
                w[cls] = max(w.get(cls, -1), idx)
        parts = []
        for cls, idx in w.items():
            lst = self.issued[cls]
            while idx + 1 < len(lst) and self.clock - lst[idx + 1][1] >= self.age[cls]:
                idx += 1
            cap = 15 if cls == 'lds' else 63
            n = len(lst) - 1 - idx
            if n > cap:
                n = cap; idx = len(lst) - 1 - cap
            self.covered[cls] = idx + 1
            parts.append(('lgkmcnt(%d)' if cls == 'lds' else 'vmcnt(%d)') % n)
        if parts:
            self.out.append('s_waitcnt ' + ' '.join(sorted(parts, reverse=True)))
    def mem(self, cls, text, tag=None):
        lst = self.issued[cls]
        if tag is not None:
            self.index[tag] = (cls, len(lst))
        lst.append((tag, self.clock))
        self.out.append(text)
    def drain(self, cls):
        self.covered[cls] = len(self.issued[cls])
        self.out.append('s_waitcnt ' + ('lgkmcnt(0)' if cls == 'lds' else 'vmcnt(0)'))
    def mfma(self, text, needs=()):
        self.need(needs)
        self.out.append(text)
        self.clock += 1
    def mark(self):
        return len(self.out)

import re
def merge_bodies(bodies):
    def split(b):
        res = []; pend = {}
        for l in b:
            if l.startswith('s_waitcnt'):
                for k, v in re.findall(r'(\w+)\((\d+)\)', l):
                    pend[k] = min(pend.get(k, 99), int(v))
            else:
                res.append((pend, l)); pend = {}
        assert not pend
        return res
    sp = [split(b) for b in bodies]
    assert all([l for _, l in x] == [l for _, l in sp[0]] for x in sp), 'steady state mismatch'
    out = []
    for items in zip(*sp):
        w = {}
        for p, _ in items:
            for k, v in p.items():
                w[k] = min(w.get(k, 99), v)
        if w:
            out.append('s_waitcnt ' + ' '.join(f'{k}({v})' for k, v in sorted(w.items(), reverse=True)))
        out.append(items[0][1])
    return out

TRANS = ('v_exp_f32', 'v_rcp_f32', 'v_log_f32', 'v_sqrt_f32', 'v_rsq_f32', 'v_sin_f32', 'v_cos_f32')
def cost_of(text):
    c = 0
    for l in text.split('\n'):
        l = l.strip()
        if not l or l.endswith(':'): continue
        c += 8 if l.startswith(TRANS) else 0.01 if l.startswith('s_') else 4
    return c

class Item:
    def __init__(self, kind, text='', tag=None):
        self.kind, self.text, self.tag = kind, text, tag
        self.cost = 0 if kind == 'gate' else 0.01 if kind == 'need' else cost_of(text)
    def emit(self, st):
        if self.kind == 'raw': st.raw(self.text)
        elif self.kind == 'need': st.need(self.tag)
        elif self.kind in ('lds', 'vm'): st.mem(self.kind, self.text, self.tag)
def raws(text):
    if isinstance(text, str): text = text.split('\n')
    return [Item('raw', l.strip()) for l in text if l.strip()]

class Sched:
    def __init__(self, st, budget=8.035):
        self.st = st; self.fill = []; self.budget = budget
    def gap(self, fixed):
        left = self.budget; ns = 0
        for it in fixed:
            it.emit(self.st); left -= it.cost
        while self.fill:
            it = self.fill[0]
            if it.kind == 'gate':
                if it.tag(): self.fill.pop(0); continue
                break
            if it.cost > left and not (left == self.budget and it.cost > self.budget): break
            if it.cost < 1:
                ns += 1
                if ns > 3: break
            self.fill.pop(0); it.emit(self.st); left -= it.cost
    def flush(self):
        while self.fill:
            it = self.fill.pop(0)
            it.emit(self.st)

def kins(MT, first_rev=False):
    ms = list(range(MT))
    if first_rev: ms.reverse()
    out = []
    for n, m in enumerate(ms):
        out += [(m, k) for k in ((0, 1) if n % 2 == 0 else (1, 0))]
    return out
```

```python
import sys, re
from asmgen import *

NAME = 'parallel_sum__ssm_conv_s5__swiglu_ffn__prompt_kernel'
XN_OFF = 0
XS = 33 * 4096
H_OFF = 5 << 20
HQ = 45 * 4096
AGG_OFF = 28 << 20
HF_OFF = AGG_OFF + 65536
XF_OFF = AGG_OFF + 131072
LF_OFF = AGG_OFF + 196608
PART_OFF = 32 << 20
XC_OFF = 48 << 20
T_OFF = 64 << 20
WS_BYTES = 0x10000000
SPIN_MAX = 200000
MFMA = 'v_mfma_f32_16x16x32_bf16'
STG, UP_OFF, SSM_OFF = 37120, 14464, 28928
WX_OFF = 4 * STG
LNB = 3 * STG
TRB = 131072
LDS_BYTES = 163840

def tok_of(a, rho):
    return 16 * (rho >> 2) + 4 * a + (rho & 3)

class Stamps:
    def __init__(self, on, sel=None):
        self.on = on; self.n = 0; self.names = []; self.sel = sel
    def __call__(self, name):
        if not self.on: return ''
        if name.startswith('s2_') != bool(self.sel) and name not in ('start', 'end', 'g2_go', 'g2_end'): return ''
        if name.startswith('s2_') and int(name[3:]) not in self.sel: return ''
        s = f's_mov_b32 s{84+self.n-1}, s100\n' if self.n else ''
        self.n += 1; self.names.append(name)
        assert self.n <= 16
        return s + ('s_memrealtime' if self.on == 2 else 's_memtime') + ' s[100:101]'
    def finish(self):
        if not self.on: return ''
        s = 's_waitcnt vmcnt(0)\n' + self('end') + f'\ns_waitcnt lgkmcnt(0)\ns_mov_b32 s{84+self.n-1}, s100\n'
        for i in range(16):
            s += f'v_mov_b32 v{4+i}, s{84+i}\n' if i < self.n else f'v_mov_b32 v{4+i}, 0\n'
        s += f's_lshl_b32 s70, s2, 2\ns_add_u32 s70, s70, s3\ns_lshl_b32 s70, s70, 6\ns_add_u32 s70, s70, {T_OFF}\nv_mov_b32 v2, s70\n'
        for i in range(4):
            s += f'buffer_store_dwordx4 v[{4+4*i}:{7+4*i}], v2, s[4:7], 0 offen offset:{16*i}\n'
        return s

def p2(r): return f'v[{r}:{r+1}]'
def cfma(d, x, y, c, t=None):
    t = d if t is None else t
    first = (f'v_pk_fma_f32 {p2(t)}, {p2(x)}, {p2(y)}, {p2(c)} op_sel_hi:[0,1,1]' if c is not None
             else f'v_pk_mul_f32 {p2(t)}, {p2(x)}, {p2(y)} op_sel_hi:[0,1]')
    return [first, f'v_pk_fma_f32 {p2(d)}, {p2(x)}, {p2(y)}, {p2(t)} op_sel:[1,1,0] op_sel_hi:[1,0,1] neg_lo:[1,0,0]']
def cfma_s(d, x, y):
    return [f'v_fmac_f32 v{d}, v{x}, v{y}', f'v_fmac_f32 v{d+1}, v{x}, v{y+1}',
            f'v_fma_f32 v{d}, -v{x+1}, v{y+1}, v{d}', f'v_fmac_f32 v{d+1}, v{x+1}, v{y}']
def ilv(*seqs):
    out = []
    for i in range(max(len(s) for s in seqs)):
        for s in seqs:
            if i < len(s): out.append(s[i])
    return out
def lines(s): return [x.strip() for x in s.split('\n') if x.strip()]
def both(f): return ilv(f(0), f(1))

def gen(stamp=0, ad1=2, ad2=3, tail=3, code_pf=True, roll=True, orient='t', ost='', lds_age=6, as_list=False,
        order='kins', p2_stage=1, sel=None, asc='sc1', PD=4, npre=8, every=8, pf2=128, pf1=(3, 4), kill=''):
    sp = Stamps(stamp, sel)
    a = Asm()
    kernel_head(a, NAME)
    st = Stream(lds_age=lds_age)
    sc = Sched(st)
    R = st.raw
    V_A, V_F, V_S, V_RF, V_RS = 1, 2, 9, 11, 12
    VZ, V0_ = 28, 29
    T0, T1, T2 = 14, 15, 16
    nlab = [0]
    def spin(load, check, first=True):
        nlab[0] += 1; n = nlab[0]
        s = f's_mov_b32 s71, {SPIN_MAX}\n'
        if not first: s += f's_branch L_chk{n}\n'
        s += f'L_poll{n}:\n{load}\ns_sub_u32 s71, s71, 1\ns_waitcnt vmcnt(0)\ns_cbranch_scc1 L_go{n}\n'
        s += f'L_chk{n}:\n{check}\ns_cbranch_vccnz L_poll{n}\nL_go{n}:'
        return s
    far = []
    def check_far(load, check):
        nlab[0] += 1; n = nlab[0]
        far.append(f'L_far{n}:\ns_mov_b32 s71, {SPIN_MAX}\nL_fp{n}:\n{load}\ns_sub_u32 s71, s71, 1\ns_waitcnt vmcnt(0)\n'
                   f's_cbranch_scc1 L_back{n}\n{check}\ns_cbranch_vccnz L_fp{n}\ns_branch L_back{n}')
        return f'{check}\ns_cbranch_vccnz L_far{n}\nL_back{n}:'

    R(f'''
    s_cmp_ge_u32 s2, 256
    s_cbranch_scc1 L_done
    s_load_dwordx2 s[20:21], s[0:1], 0
    s_load_dwordx2 s[4:5], s[0:1], 120
    s_load_dwordx4 s[72:75], s[0:1], 80
    s_load_dwordx4 s[76:79], s[0:1], 24
    s_load_dwordx2 s[44:45], s[0:1], 8
    s_load_dwordx2 s[48:49], s[0:1], 16
    s_load_dwordx2 s[52:53], s[0:1], 56
    s_load_dwordx2 s[40:41], s[0:1], 112
    s_load_dwordx2 s[24:25], s[0:1], 96
    s_load_dwordx2 s[28:29], s[0:1], 40
    s_load_dwordx2 s[32:33], s[0:1], 48
    s_load_dwordx2 s[36:37], s[0:1], 104
    s_load_dwordx2 s[80:81], s[0:1], 64
    {sp('start')}
    v_lshrrev_b32 v1, 6, v0
    v_and_b32 v0, 63, v0
    v_readfirstlane_b32 s3, v1
    v_lshlrev_b32 v{V_A}, 4, v0
    s_bfe_u32 s58, s2, 0x20001
    s_and_b32 s56, s2, 1
    s_lshl_b32 s56, s56, 2
    s_lshr_b32 s65, s2, 6
    s_add_u32 s56, s56, s65
    s_bfe_u32 s59, s2, 0x30003
    s_lshl_b32 s57, s58, 3
    s_add_u32 s57, s57, s59
    s_lshr_b32 s82, s3, 1
    s_and_b32 s83, s3, 1
    s_lshl_b32 s60, s56, 2
    s_add_u32 s61, s60, s58
    s_and_b32 s62, s59, 1
    s_lshl_b32 s63, s62, 1
    s_add_u32 s63, s63, s82
    s_lshl_b32 s63, s63, 4
    s_lshr_b32 s64, s59, 1
    s_lshl_b32 s65, s64, 2
    s_add_u32 s63, s63, s65
    s_lshl_b32 s65, s83, 1
    s_add_u32 s63, s63, s65
    s_lshl_b32 s65, s61, 6
    s_add_u32 s63, s63, s65
    s_lshl_b32 s63, s63, 11
    s_mov_b32 s22, {2048*1024*2}
    s_mov_b32 s23, 0x20000
    s_mov_b32 s6, {WS_BYTES}
    s_mov_b32 s7, 0x20000
    s_or_b32 s65, s2, s3
    s_cmp_eq_u32 s65, 0
    s_cselect_b32 s68, 0, 0x80000000
    v_lshrrev_b32 v26, 1, v0
    v_and_b32 v27, 16, v{V_A}
    v_lshl_add_u32 v26, v26, 7, v27
    v_add_u32 v26, {LF_OFF}, v26
    v_or_b32 v27, s68, v26
    v_mov_b32 v20, 0
    v_mov_b32 v21, 0
    v_mov_b32 v22, 0
    v_mov_b32 v23, 0
    s_waitcnt lgkmcnt(0)
    ''')
    st.mem('vm', 'buffer_store_dwordx4 v[20:23], v27, s[4:7], 0 offen sc1', ('CLR',))
    for k in range(4):
        st.mem('vm', f'buffer_load_dwordx4 v[{32+4*k}:{35+4*k}], v{V_A}, s[20:23], s63 offen offset:{1024*k}', ('X', k))
    if code_pf:
        R(f'''
        s_getpc_b64 s[66:67]
        L_pc:
        s_bfe_u32 s65, s2, 0x20003
        s_lshl_b32 s65, s65, 2
        s_add_u32 s65, s65, s3
        s_lshl_b32 s65, s65, 13
        v_lshl_add_u32 v{T0}, v0, 7, s65
        v_min_u32 v{T0}, L_done-L_pc, v{T0}
        ''')
        st.mem('vm', f'global_load_dword v31, v{T0}, s[66:67]')
    R(f'''
    s_mul_i32 s70, s61, {XS}
    s_lshl_b32 s65, s64, 10
    s_add_u32 s70, s70, s65
    s_lshl_b32 s65, s62, 7
    s_add_u32 s70, s70, s65
    s_lshl_b32 s65, s3, 15
    s_add_u32 s70, s70, s65
    s_add_u32 s70, s70, {XN_OFF}
    s_lshl_b32 s71, s61, 5
    s_add_u32 s71, s71, s59
    s_lshl_b32 s71, s71, 2
    s_add_u32 s71, s71, {LF_OFF}
    s_mov_b32 s42, 256
    s_mov_b32 s43, 0x20000
    s_cmp_eq_u32 s82, 0
    s_cselect_b32 s8, s72, s74
    s_cselect_b32 s9, s73, s75
    s_cselect_b32 s12, s76, s78
    s_cselect_b32 s13, s77, s79
    s_cselect_b64 s[18:19], 0, -1
    s_cmp_eq_u32 s83, 0
    s_cselect_b64 s[16:17], 0, -1
    s_mov_b32 s10, {1024*3584*2}
    s_mov_b32 s11, 0x20000
    s_mov_b32 s14, {1024*1024*2}
    s_mov_b32 s15, 0x20000
    s_mov_b32 s46, 2048
    s_mov_b32 s47, 0x20000
    s_mov_b32 s50, 2048
    s_mov_b32 s51, 0x20000
    s_mov_b32 s54, 2048
    s_mov_b32 s55, 0x20000
    s_mov_b32 s79, s71
    s_add_u32 s72, s60, s3
    s_lshl_b32 s73, s72, 2
    s_add_u32 s73, s73, s58
    s_lshl_b32 s74, s73, 7
    s_add_u32 s74, s74, {HF_OFF}
    s_lshl_b32 s75, s59, 2
    s_add_u32 s75, s75, s74
    s_lshl_b32 s76, s2, 2
    s_add_u32 s76, s76, s3
    s_lshl_b32 s77, s76, 6
    s_add_u32 s77, s77, {XF_OFF}
    s_lshl_b32 s78, s57, 3
    s_add_u32 s78, s78, 7
    s_sub_u32 s78, s78, s56
    s_lshl_b32 s78, s78, 8
    s_add_u32 s78, s78, {AGG_OFF}
    v_cmp_ne_u32 vcc, 0, v0
    v_mov_b32 v{V0_}, 0
    v_mov_b32 v24, -1
    v_bfrev_b32 v25, 1
    v_cndmask_b32 v{VZ}, 0, v25, vcc
    v_lshlrev_b32 v25, 2, v0
    v_and_b32 v27, 15, v0
    v_lshlrev_b32 v27, 1, v27
    s_lshl_b32 s65, s57, 6
    ''')
    for pj in range(2):
        for i, srd in enumerate((44, 48, 52)):
            st.mem('vm', f'buffer_load_ushort v{96+pj*4+i}, v27, s[{srd}:{srd+3}], s65 offen offset:{32*pj}', ('P', pj, i))
    if pf1:
        R(f'''
        s_lshl_b32 s69, s2, 1
        s_add_u32 s69, s69, s83
        s_mul_i32 s65, s69, 896
        s_mov_b32 s71, {64*7168 - 7*128}
        v_mul_u32_u24 v18, 9363, v0
        v_lshrrev_b32 v18, 16, v18
        v_mul_lo_u32 v18, v18, s71
        v_lshl_add_u32 v19, v0, 7, s65
        v_add_u32 v105, v18, v19
        v_cmp_gt_u32 vcc, {7*pf1[0]}, v0
        v_bfrev_b32 v18, 1
        s_lshl_b32 s65, s69, 12
        v_lshl_add_u32 v104, v0, 7, s65
        v_cndmask_b32 v19, v18, v105, vcc
        ''')
        if pf1[0]: st.mem('vm', 'buffer_load_dword v31, v19, s[8:11], 0 offen')
    st.mem('vm', f'buffer_store_dword v20, v{VZ}, s[4:7], s75 offen sc1')
    st.mem('vm', f'buffer_store_dwordx4 v[20:23], v{VZ}, s[4:7], s77 offen sc1')
    st.mem('vm', f'buffer_store_dword v24, v25, s[4:7], s78 offen sc1')
    R('s_lshl_b32 s65, s62, 1')
    for i in range(7):
        R(f'''
        v_add_u32 v{T0}, {64*i}, v0
        v_mul_u32_u24 v{T1}, 4682, v{T0}
        v_lshrrev_b32 v{T1}, 16, v{T1}
        v_mad_i32_i24 v{T0}, v{T1}, -14, v{T0}
        v_add_u32 v{T0}, s65, v{T0}
        v_subrev_u32 v{T2}, 14, v{T0}
        v_min_u32 v{T0}, v{T0}, v{T2}
        v_lshrrev_b32 v{T2}, 1, v{T1}
        v_xor_b32 v{T2}, v{T2}, v{T1}
        v_and_b32 v{T2}, 4, v{T2}
        v_mul_u32_u24 v{T2}, 3, v{T2}
        v_xor_b32 v{T1}, v{T1}, v{T2}
        v_mul_u32_u24 v{T1}, 7168, v{T1}
        v_lshl_add_u32 v{V_F+i}, v{T0}, 4, v{T1}
        ''')
        if i % 4:
            R(f'v_subrev_u32 v{V_F+i}, {1024*(i%4)}, v{V_F+i}')
    R(f'''
    v_lshrrev_b32 v{T0}, 3, v0
    v_lshrrev_b32 v{T1}, 4, v0
    v_and_b32 v{T2}, 7, v0
    v_xor_b32 v{T1}, v{T1}, v{T2}
    v_lshlrev_b32 v{T0}, 11, v{T0}
    v_lshl_add_u32 v{V_S}, v{T1}, 4, v{T0}
    v_xor_b32 v{V_S+1}, 64, v{V_S}
    v_add_u32 v{V_S+1}, {8*2048-1024}, v{V_S+1}
    s_mul_i32 s60, s72, {XS}
    s_add_u32 s60, s60, {XN_OFF}
    s_mul_i32 s61, s57, 224
    s_mul_i32 s65, s83, {32*7168}
    s_add_u32 s61, s61, s65
    s_lshl_b32 s62, s57, 1
    s_add_u32 s62, s62, s83
    s_lshl_b32 s62, s62, 15
    s_mul_i32 s63, s82, {UP_OFF}
    s_mul_i32 s65, s83, 7168
    s_add_u32 s63, s63, s65
    s_lshl_b32 s64, s3, 11
    s_add_u32 s64, s64, {SSM_OFF}
    ''')
    NST = 16
    def accn(t): return ('v', 32 + t * 4) if t < 56 else ('a', (t - 56) * 4)
    def acc1(j, m): p, b = accn(j * 4 + m); return vr(b, 4, p)
    def aring(stage, k, m): return ar(128 + (stage % 4) * 32 + (k * 4 + m) * 4, 4)
    def bfr(g, k, off=0, n=4): return ar(64 + (g % 3) * 8 + k * 4 + off, n)
    A_STASH = 88
    def dmaB(stage):
        ops = []
        if stage >= NST: return ops
        b = (stage % 4) * STG
        for i in range(7):
            pre = f's_add_u32 m0, s63, {b + (i//4)*4096}' if i % 4 == 0 else None
            post = f's_add_u32 s61, s61, {64*7168}' if i == 6 else None
            ops.append((pre, f'buffer_load_dwordx4 v{V_F+i}, s[8:11], s61 offen offset:{1024*(i%4)} lds', ('B', stage, i), post))
        for i in range(2):
            pre = f's_add_u32 m0, s64, {b}' if i == 0 else None
            post = 's_add_u32 s62, s62, 128' if i == 1 else None
            ops.append((pre, f'buffer_load_dwordx4 v{V_S+i}, s[12:15], s62 offen offset:{1024*i} lds', ('B', stage, 7 + i), post))
        return ops
    def ldA(stage, nst, dst, key):
        ops = []
        if stage >= nst: return ops
        for k in range(2):
            for m in range(4):
                post = 's_add_u32 s60, s60, 4096' if m == 3 else None
                ops.append((None, f'buffer_load_dwordx4 {dst(stage, k, m)}, v{V_A}, s[4:7], s60 offen offset:{1024*m} {asc}', (key, stage, k * 4 + m), post))
        return ops
    def emit_vm(op):
        pre, text, tag, post = op
        if pre: R(pre); R('s_nop 0')
        st.mem('vm', text, tag)
        if post: R(post)
    R(f'v_or_b32 v17, s68, v{VZ}\nv_mov_b32 v27, 1')
    st.need([('CLR',)])
    st.mem('vm', 'buffer_store_dword v27, v17, s[40:43], 0 offen sc1')
    for op in dmaB(0): emit_vm(op)
    R(sp('issued'))
    def ln_a(r):
        raw, f, s = 32 + 8 * r, 48 + 16 * r, 80 + 8 * r
        o = []
        for i in range(8):
            o += [f'v_lshlrev_b32 v{f+2*i}, 16, v{raw+i}', f'v_and_b32 v{f+2*i+1}, 0xffff0000, v{raw+i}']
        o += [f'v_pk_add_f32 {p2(raw+2*i)}, {p2(f+4*i)}, {p2(f+4*i+2)}' for i in range(4)]
        o += [f'v_pk_add_f32 {p2(raw)}, {p2(raw)}, {p2(raw+2)}', f'v_pk_add_f32 {p2(raw+4)}, {p2(raw+4)}, {p2(raw+6)}',
              f'v_pk_add_f32 {p2(raw)}, {p2(raw)}, {p2(raw+4)}', f'v_add_f32 v{s}, v{raw}, v{raw+1}']
        return o
    def wave_sum(off):
        v = [80 + off, 88 + off]; t = [86, 94]
        for dpp in ('quad_perm:[1,0,3,2]', 'quad_perm:[2,3,0,1]', 'row_ror:4', 'row_ror:8'):
            R('s_nop 0')
            for r in range(2): R(f'v_add_f32_dpp v{v[r]}, v{v[r]}, v{v[r]} {dpp} row_mask:0xf bank_mask:0xf')
        for sw in ('v_permlane16_swap_b32', 'v_permlane32_swap_b32'):
            for r in range(2): R(f'v_mov_b32 v{t[r]}, v{v[r]}')
            R('s_nop 0')
            R(f'{sw} v{v[0]}, v{t[0]}\n{sw} v{v[1]}, v{t[1]}')
            for r in range(2): R(f'v_add_f32 v{v[r]}, v{v[r]}, v{t[r]}')
    def ln_b(r):
        raw, f, s = 32 + 8 * r, 48 + 16 * r, 80 + 8 * r
        o = [f'v_mul_f32 v{s}, 0x3a800000, v{s}']
        for i in range(8):
            t = raw + 2 * (i % 2); ac = raw + 4 + 2 * (i % 2)
            o += [f'v_pk_add_f32 {p2(t)}, {p2(f+2*i)}, {p2(s)} op_sel_hi:[1,0] neg_lo:[0,1] neg_hi:[0,1]']
            o += [f'v_pk_mul_f32 {p2(ac)}, {p2(t)}, {p2(t)}' if i < 2 else f'v_pk_fma_f32 {p2(ac)}, {p2(t)}, {p2(t)}, {p2(ac)}']
        o += [f'v_pk_add_f32 {p2(raw+4)}, {p2(raw+4)}, {p2(raw+6)}', f'v_add_f32 v{s+2}, v{raw+4}, v{raw+5}']
        return o
    def ln_c(r):
        raw, f, s = 32 + 8 * r, 48 + 16 * r, 80 + 8 * r
        o = lines(f'''
        v_mul_f32 v{s+2}, 0x3a800000, v{s+2}
        v_cvt_pk_bf16_f32 v{s}, v{s}, v{s+2}
        v_and_b32 v{s+2}, 0xffff0000, v{s}
        v_lshlrev_b32 v{s}, 16, v{s}
        v_add_f32 v{s+2}, 0x3727c5ac, v{s+2}
        v_cvt_pk_bf16_f32 v{s+2}, v{s+2}, v{s+2}
        v_lshlrev_b32 v{s+2}, 16, v{s+2}
        v_sqrt_f32 v{s+2}, v{s+2}
        s_nop 0
        v_cvt_pk_bf16_f32 v{s+2}, v{s+2}, v{s+2}
        v_lshlrev_b32 v{s+2}, 16, v{s+2}
        v_rcp_f32 v{s+2}, v{s+2}
        ''')
        for i in range(8):
            x = f + 2 * i
            o += [f'v_pk_add_f32 {p2(x)}, {p2(x)}, {p2(s)} op_sel_hi:[1,0] neg_lo:[0,1] neg_hi:[0,1]',
                  f'v_cvt_pk_bf16_f32 v{x+1}, v{x}, v{x+1}', f'v_lshlrev_b32 v{x}, 16, v{x+1}', f'v_and_b32 v{x+1}, 0xffff0000, v{x+1}',
                  f'v_pk_mul_f32 {p2(x)}, {p2(x)}, {p2(s+2)} op_sel_hi:[1,0]', f'v_cvt_pk_bf16_f32 v{raw+i}, v{x}, v{x+1}']
        return o
    R(f'''
    s_lshl_b32 s65, s3, 1
    v_and_b32 v{T0}, 7, v0
    v_xor_b32 v{T1}, s65, v{T0}
    v_lshlrev_b32 v{T1}, 4, v{T1}
    v_lshl_add_u32 v17, v0, 7, v{T1}
    v_add_u32 v17, {LNB}, v17
    v_xor_b32 v18, 16, v17
    v_lshrrev_b32 v{T1}, 3, v0
    v_xor_b32 v{T2}, v{T1}, v{T0}
    v_lshlrev_b32 v{T2}, 4, v{T2}
    v_lshl_add_u32 v19, v{T1}, 7, v{T2}
    s_lshl_b32 s65, s3, 12
    s_add_u32 s65, s65, {LNB}
    v_add_u32 v19, s65, v19
    v_and_b32 v{T2}, 3, v{T1}
    v_lshlrev_b32 v{T2}, 8, v{T2}
    v_lshl_add_u32 v{T2}, v{T0}, 4, v{T2}
    v_lshrrev_b32 v{T1}, 5, v0
    v_lshl_add_u32 v24, v{T1}, 12, v{T2}
    ''')
    st.need([('X', 3)])
    for r in range(2):
        for h in range(2):
            st.mem('lds', f'ds_write_b128 v{17+r}, v[{32+8*r+4*h}:{35+8*r+4*h}] offset:{16384 + 8192*h}')
    R('\n'.join(both(ln_a))); wave_sum(0)
    R('\n'.join(both(ln_b))); wave_sum(2)
    R('\n'.join(both(ln_c)))
    for r in range(2):
        for h in range(2):
            st.mem('lds', f'ds_write_b128 v{17+r}, v[{32+8*r+4*h}:{35+8*r+4*h}] offset:{8192*h}')
    gopoll = f'buffer_load_dword v31, v{V0_}, s[40:43], 0 offen sc1'
    st.mem('vm', gopoll)
    st.drain('lds'); R('s_barrier')
    for t in range(4):
        st.mem('lds', f'ds_read_b128 v[{48+4*t}:{51+4*t}], v19 offset:{1024*t}', ('LN', t))
    for t in range(4):
        st.need([('LN', t)])
        st.mem('vm', f'buffer_store_dwordx4 v[{48+4*t}:{51+4*t}], v24, s[4:7], s70 offen sc1', ('XS', t))
        R('s_add_u32 s70, s70, 8192')
    R(sp('ln_stored'))
    for op in dmaB(1): emit_vm(op)
    R(f'''
    s_cmp_eq_u32 s3, 0
    s_cselect_b32 s65, 0, 0x80000000
    v_or_b32 v17, s65, v{VZ}
    v_and_b32 v30, 7, v0
    v_lshlrev_b32 v30, 2, v30
    v_lshrrev_b32 v{T0}, 5, v0
    v_bfe_u32 v{T1}, v0, 2, 3
    v_lshl_add_u32 v{T1}, v{T0}, 4, v{T1}
    v_mul_u32_u24 v{T1}, 224, v{T1}
    v_and_b32 v{T2}, 3, v0
    v_lshl_add_u32 v{V_RF}, v{T2}, 3, v{T1}
    v_lshrrev_b32 v{T0}, 4, v0
    v_bfe_u32 v{T1}, v0, 1, 3
    v_xor_b32 v{T1}, v{T1}, v{T0}
    v_and_b32 v{T2}, 15, v0
    v_lshlrev_b32 v{T2}, 7, v{T2}
    v_lshl_add_u32 v{V_RS}, v{T1}, 4, v{T2}
    v_xor_b32 v{V_RS+1}, 64, v{V_RS}
    v_and_b32 v{T0}, 16, v0
    v_cmp_ne_u32 s[66:67], 0, v{T0}
    v_cmp_lt_u32 s[68:69], 31, v0
    ''')
    def params(pj):
        b = 112 + 32 * pj; lre, lim, ld = 96 + pj * 4, 97 + pj * 4, 98 + pj * 4
        t = b + 16
        o = lines(f'''
        v_lshlrev_b32 v{lre}, 16, v{lre}
        v_lshlrev_b32 v{lim}, 16, v{lim}
        v_lshlrev_b32 v{ld}, 16, v{ld}
        v_mul_f32 v{ld}, 0x3fb8aa3b, v{ld}
        v_exp_f32 v{ld}, v{ld}
        v_mul_f32 v{t+4}, v{lre}, v{lre}
        v_cvt_pk_bf16_f32 v{ld}, v{ld}, v{ld}
        v_lshlrev_b32 v{ld}, 16, v{ld}
        v_mul_f32 v{t}, v{ld}, v{lre}
        v_mul_f32 v{t+1}, v{ld}, v{lim}
        v_mul_f32 v{t}, 0x3fb8aa3b, v{t}
        v_mul_f32 v{t+1}, 0.15915494, v{t+1}
        v_exp_f32 v{t}, v{t}
        v_rndne_f32 v{t+2}, v{t+1}
        v_sub_f32 v{t+1}, v{t+1}, v{t+2}
        v_cos_f32 v{t+2}, v{t+1}
        v_sin_f32 v{t+3}, v{t+1}
        v_fmac_f32 v{t+4}, v{lim}, v{lim}
        v_mul_f32 v{b}, v{t}, v{t+2}
        v_mul_f32 v{b+1}, v{t}, v{t+3}
        v_rcp_f32 v{t+4}, v{t+4}
        v_add_f32 v{t}, -1.0, v{b}
        v_add_f32 v{t+4}, v{t+4}, v{t+4}
        v_mul_f32 v{t+1}, v{t}, v{lre}
        v_mul_f32 v{t+2}, v{b+1}, v{lre}
        v_fmac_f32 v{t+1}, v{b+1}, v{lim}
        v_fma_f32 v{t+2}, -v{t}, v{lim}, v{t+2}
        v_mul_f32 v{b+2}, v{t+1}, v{t+4}
        v_mul_f32 v{b+3}, v{t+2}, v{t+4}
        ''')
        o += cfma(t, b, b, None) + cfma(t + 2, t, t, None) + cfma(t, t + 2, t + 2, None) + cfma(b + 4, t, t, None)
        for k in (4, 6, 8, 10):
            o += cfma(b + k + 2, b + k, b + k, None)
        o += [f'v_cndmask_b32 v{t}, 1.0, v{b+4}, s[66:67]', f'v_cndmask_b32 v{t+1}, 0, v{b+5}, s[66:67]',
              f'v_cndmask_b32 v{t+2}, 1.0, v{b+6}, s[68:69]', f'v_cndmask_b32 v{t+3}, 0, v{b+7}, s[68:69]']
        o += cfma(t + 4, t, t + 2, None)
        o += [f'v_cndmask_b32 v{t}, 1.0, v{b+8}, s[16:17]', f'v_cndmask_b32 v{t+1}, 0, v{b+9}, s[16:17]',
              f'v_cndmask_b32 v{t+2}, 1.0, v{b+10}, s[18:19]', f'v_cndmask_b32 v{t+3}, 0, v{b+11}, s[18:19]']
        o += cfma(t + 6, t, t + 2, None) + cfma(b + 14, t + 4, t + 6, None)
        o += [f'v_mov_b32 v{b+10}, v{t+4}', f'v_mov_b32 v{b+11}, v{t+5}']
        o += [f'v_accvgpr_write_b32 a{A_STASH+16*pj+k}, v{b+k}' for k in range(16)]
        return o
    pr = both(params)
    st.need([('P', 1, 2)])
    st.need([('XS', 3)])
    R(check_far(gopoll, 'v_cmp_ne_u32 vcc, 1, v31'))
    R('s_barrier')
    st.mem('vm', f'buffer_store_dword v27, v17, s[4:7], s79 offen sc1')
    R(sp('ln_flag'))
    for t in range(4):
        st.mem('lds', f'ds_read_b128 a[{224+4*t}:{227+4*t}], v19 offset:{16384 + 1024*t}', ('XC', t))
    R(f's_add_u32 s70, s70, {XC_OFF - XN_OFF - 32768}')
    R('\n'.join(pr))
    if pf2:
        mul = 128 // pf2
        R(f'''
        s_bitcmp1_b32 s2, 0
        s_cselect_b32 s20, s32, s28
        s_cselect_b32 s21, s33, s29
        s_lshr_b32 s26, s2, 1
        s_mul_i32 s26, s26, {11*128}
        s_mul_i32 s27, s2, 3
        s_add_u32 s27, s27, s3
        s_mul_i32 s27, s27, {7*128}
        s_cmp_eq_u32 s3, 3
        s_cselect_b32 s20, s20, s24
        s_cselect_b32 s21, s21, s25
        s_cselect_b32 s22, {1024*1024*2}, s10
        s_cselect_b32 s26, s26, s27
        s_mov_b32 s27, {768*7*128}
        s_cselect_b32 s27, {128*11*128}, s27
        s_cselect_b32 s65, {11*mul}, {7*mul}
        v_cmp_gt_u32 vcc, s65, v0
        v_mul_u32_u24 v20, {pf2}, v0
        v_bfrev_b32 v21, 1
        v_add_u32 v20, s26, v20
        v_cndmask_b32 v20, v21, v20, vcc
        ''')
    if pf1:
        R(f'''
        v_bfrev_b32 v21, 1
        v_add_u32 v105, {max(pf1[0], 3)*64*7168}, v105
        v_cmp_gt_u32 vcc, {7*pf1[1]}, v0
        v_add_u32 v106, {pf1[1]*64*7168}, v105
        v_cndmask_b32 v23, v104, v21, s[68:69]
        v_cndmask_b32 v22, v21, v105, vcc
        v_cmp_gt_u32 vcc, 7, v0
        s_nop 1
        v_cndmask_b32 v21, v21, v106, vcc
        ''')
    def rdB1(g):
        stage, j = divmod(g, 18)
        if stage >= NST: return []
        if j < 4:
            return [Item('lds', f'ds_read_b128 {bfr(g, k)}, v{V_RS+k} offset:{SSM_OFF + j*2048}', ('F', g, k)) for k in range(2)]
        jj = j - 4
        return [Item('lds', f'ds_read_b64_tr_b16 {bfr(g, k, 2*q, 2)}, v{V_RF} offset:{(jj&1)*UP_OFF + (32*k + 8*q)*224 + 32*(jj>>1)}',
                     ('F', g, k) if q else None) for k in range(2) for q in range(2)]
    for g in range(2):
        for it in rdB1(g): it.emit(st)
    R(f's_lshl_b32 s65, s72, 7\ns_add_u32 s65, s65, {LF_OFF}')
    R(spin(f'buffer_load_dword v31, v30, s[4:7], s65 offen sc1', 'v_cmp_ne_u32 vcc, 1, v31'))
    st.covered['vm'] = len(st.issued['vm'])
    R(sp('ln_polled'))
    for s_ in range(ad1):
        for op in ldA(s_, NST, aring, 'A'): emit_vm(op)
    if pf1:
        st.mem('vm', 'buffer_load_dword v31, v22, s[8:11], 0 offen')
        st.mem('vm', 'buffer_load_dword v31, v23, s[12:15], 0 offen')

    def group(mf, reads, vmq, vgaps, pre0=()):
        fixed = [[] for _ in mf]
        fixed[0] += list(pre0)
        for n, it in enumerate(reads): fixed[n].append(it)
        for gp in vgaps:
            if vmq:
                pre, text, tag, post = vmq.pop(0)
                if pre: fixed[gp - 1].append(Item('raw', pre))
                fixed[gp].append(Item('vm', text, tag))
                if post: fixed[gp].append(Item('raw', post))
        for (text, needs), fx in zip(mf, fixed):
            st.mfma(text, needs)
            sc.gap(fx)
    def mk_order(j):
        if order == 'kins': return kins(4, j % 2 == 1)
        return [(m, k) for k in range(2) for m in range(4)]

    N2, NFF = 22, 14
    assert ad1 == 2
    V_F2, V_RF2, V_S2, V_RS2 = 2, 6, 14, 20
    def dmaB2(stage):
        ops = []
        if stage >= N2: return ops
        for i in range(4):
            pre = f's_add_u32 m0, s63, {(stage % 8) * 16384}' if i == 0 else None
            post = None
            if stage < NFF:
                t = f'buffer_load_dwordx4 v{V_F2+i}, s[24:27], s61 offen offset:{1024*i} lds'
                if i == 3:
                    if stage == 11: post = 's_mov_b32 s61, s64'
                    elif stage == 12: post = f's_add_u32 s61, s61, {448*2048}'
                    elif stage % 4 == 3: post = f's_sub_u32 s61, s61, {(3*224-32)*2048}'
                    elif stage < 12: post = f's_add_u32 s61, s61, {224*2048}'
            else:
                comp = (stage - NFF) & 1
                if i == 3 and comp: post = 's_add_u32 s62, s62, 128'
                t = f'buffer_load_dwordx4 v{V_S2+i}, s[{28+4*comp}:{31+4*comp}], s62 offen offset:{1024*i} lds'
            ops.append((pre, t, ('B2', stage, i), post))
        return ops
    g2_setup_a = raws(f'''
    s_and_b32 s65, s56, 3
    s_xor_b32 s79, s58, s65
    s_lshl_b32 s65, s79, 2
    v_lshrrev_b32 v{T0}, 4, v0
    v_and_b32 v{T1}, 15, v0
    v_lshlrev_b32 v{T2}, 1, v{T0}
    v_xor_b32 v{T1}, v{T1}, v{T2}
    v_xor_b32 v{T1}, s65, v{T1}
    v_lshlrev_b32 v{T2}, 11, v{T0}
    v_lshl_add_u32 v{V_F2}, v{T1}, 4, v{T2}
    v_xor_b32 v{V_F2+1}, 128, v{V_F2}
    v_add_u32 v{V_F2+2}, {2*7168}, v{V_F2}
    v_add_u32 v{V_F2+3}, {3*7168}, v{V_F2+1}
    v_add_u32 v{V_F2+1}, 7168, v{V_F2+1}
    s_mul_i32 s61, s58, {896*2048}
    s_lshl_b32 s65, s83, 15
    s_add_u32 s61, s61, s65
    s_lshl_b32 s65, s59, 8
    s_add_u32 s61, s61, s65
    s_mul_i32 s64, s82, {224*2048}
    s_add_u32 s64, s64, s61
    s_add_u32 s64, s64, {96*2048}
    s_lshl_b32 s65, s82, 18
    s_add_u32 s61, s61, s65
    s_lshl_b32 s63, s3, 12
    s_xor_b32 s62, s3, s79
    s_lshl_b32 s65, s59, 2
    s_add_u32 s62, s62, s65
    s_add_u32 s79, s79, s65
    s_lshl_b32 s62, s62, 16
    s_lshl_b32 s65, s58, 9
    s_add_u32 s62, s62, s65
    s_mov_b32 s26, {3584*1024*2}
    s_mov_b32 s27, 0x20000
    s_mov_b32 s30, {1024*1024*2}
    s_mov_b32 s31, 0x20000
    s_mov_b32 s34, {1024*1024*2}
    s_mov_b32 s35, 0x20000
    s_mov_b32 s38, {2048*1024*4}
    s_mov_b32 s39, 0x20000
    s_mov_b32 s48, s80
    s_mov_b32 s49, s81
    ''')
    PAIR0 = 52
    g2_setup_b = raws(f'''
    s_mul_i32 s73, s73, {HQ}
    s_add_u32 s73, s73, {H_OFF}
    s_lshl_b32 s65, s59, 12
    s_add_u32 s54, s73, s65
    s_lshr_b32 s65, s59, 1
    s_lshl_b32 s55, s65, 12
    s_add_u32 s55, s55, s73
    s_and_b32 s70, s59, 1
    s_lshl_b32 s70, s70, 10
    s_add_u32 s55, s55, s70
    s_add_u32 s55, s55, {24*4096}
    s_lshl_b32 s65, s65, 14
    s_lshl_b32 s70, s70, 2
    s_add_u32 s80, s65, s70
    s_add_u32 s80, s80, s73
    s_add_u32 s80, s80, {28*4096}
    s_mov_b32 s52, 0xbfb8aa3b
    s_mov_b32 s53, 0xbfb8aa3b
    ''') + [Item('raw', f's_lshl_b32 s65, s57, 11\ns_add_u32 s65, s65, {AGG_OFF}\ns_add_u32 s44, s4, s65\ns_addc_u32 s45, s5, 0')]

    vmq = dmaB(2); marks = []
    emit_vm(vmq.pop(0)); emit_vm(vmq.pop(0))
    allpoll = 'buffer_load_dwordx4 v[16:19], v26, s[4:7], 0 offen sc1'
    for stage in range(NST):
        marks.append(st.mark())
        vmq += ldA(stage + ad1, NST, aring, 'A')
        if pf2 and 1 <= stage <= 12:
            vmq.append((None, 'buffer_load_dword v31, v20, s[20:23], 0 offen', None, 'v_add_u32 v20, s27, v20'))
        if pf1 and stage <= 12:
            vmq.append((None, 'buffer_load_dword v31, v21, s[8:11], 0 offen', None, f'v_add_u32 v21, {64*7168}, v21'))
        for j in range(18):
            g = stage * 18 + j
            pre0 = []
            if j == 16 and stage + 1 < NST:
                sw = stage + 1
                assert not vmq, vmq
                pre0 = [Item('need', tag=[('B', sw, 8)]), Item('raw', 's_barrier')]
                d = STG if sw % 4 else -3 * STG
                pre0 += raws([f'v_add_u32 v{v}, {d & 0xffffffff:#x}, v{v}' for v in (V_RS, V_RS + 1)])
                sc.fill += raws([f'v_add_u32 v{V_RF}, {d & 0xffffffff:#x}, v{V_RF}'])
                vmq += dmaB(sw + 2)
                if sw >= 14:
                    assert len(sc.fill) == 1
                    vmq += dmaB2(2 * (sw - 14)) + dmaB2(2 * (sw - 14) + 1)
            if stage == 0 and j in (8, 10, 12, 14):
                t = j // 2 - 4
                pre0 = [Item('need', tag=[('XC', t)]), Item('vm', f'buffer_store_dwordx4 a[{224+4*t}:{227+4*t}], v24, s[4:7], s70 offen sc1'),
                        Item('raw', 's_add_u32 s70, s70, 8192')]
            if stage == 13 and j == 8: sc.fill += g2_setup_a
            if stage == 14 and j == 8: sc.fill += g2_setup_b
            if stage == 15 and j == 8:
                vmq.append((None, allpoll, ('ALL',), None))
            mf = []; seen = set()
            for (m, k) in mk_order(j):
                c = acc1(j, m) if (stage > 0 or m in seen) else '0'
                seen.add(m)
                af, bf = aring(stage, k, m), bfr(g, k)
                needs = [('F', g, 1), ('A', stage, 7)]
                mf.append((f'{MFMA} {acc1(j,m)}, {af}, {bf}, {c}' if j < 4 else f'{MFMA} {acc1(j,m)}, {bf}, {af}, {c}', needs))
            group(mf, rdB1(g + 2), vmq, (3, 6) if (j == 1 and pf1) else (5,), pre0)
            if g == 0 and stamp: R(sp('g1_go'))
    marks.append(st.mark())
    assert not vmq and not sc.fill
    if roll:
        body = st.out
        b0 = merge_bodies([body[marks[i]:marks[i + 4]] for i in (1, 5, 9)])
        if 'l' in kill: b0 = [l for l in b0 if not l.startswith('ds_read')]
        if 'h' in kill: b0 = [l for n, l in enumerate(b0) if not (l.startswith('ds_read') and int(re.findall(r'a.(\d+)', l)[0]) % 8 >= 4)]
        if 'A' in kill: b0 = [l for l in b0 if not l.startswith('buffer_load_dwordx4 a')]
        if 'B' in kill: b0 = [l for l in b0 if not l.endswith(' lds')]
        if 'D' in kill: b0 = sum(([l, l] if l.startswith('buffer_load_dwordx4 a') else [l] for l in b0), [])
        st.out = (body[:marks[1]] + ['s_mov_b32 s70, 3', 'L_g1_loop:'] + b0 +
                  ['s_sub_u32 s70, s70, 1', 's_cmp_lg_u32 s70, 0', 's_cbranch_scc1 L_g1_loop'] + body[marks[13]:])
    R(sp('g1_end'))

    def unstash(k, dst):
        return [f'v_accvgpr_read_b32 v{dst+2*pj+i}, a{A_STASH+16*pj+k+i}' for pj in range(2) for i in range(2)]
    def tile_regs(jj, mat, m, pre):
        p, b = accn((4 + 2 * jj + mat) * 4 + m)
        if p == 'v': return b
        d = 96 + b
        pre += [f'v_accvgpr_read_b32 v{d+i}, a{b+i}' for i in range(4)]
        return d
    def swiglu(tiles, store, tag, tmp=6):
        pre = []
        gs_ = [tile_regs(jj, 0, m, pre) for jj, m in tiles]; us = [tile_regs(jj, 1, m, pre) for jj, m in tiles]
        G = [g + i for g in gs_ for i in (0, 2)]; U = [u + i for u in us for i in (0, 2)]
        out = gs_[0]
        o = list(pre)
        o += [f'v_pk_mul_f32 {p2(tmp+2*k)}, {p2(G[k])}, s[52:53]' for k in range(4)]
        o += [f'v_exp_f32 v{tmp+k}, v{tmp+k}' for k in range(8)]
        o += [f'v_pk_mul_f32 {p2(U[k])}, {p2(G[k])}, {p2(U[k])}' for k in range(4)]
        o += [f'v_pk_add_f32 {p2(tmp+2*k)}, {p2(tmp+2*k)}, 1.0 op_sel_hi:[1,0]' for k in range(4)]
        o += [f'v_rcp_f32 v{tmp+k}, v{tmp+k}' for k in range(8)]
        o += [f'v_pk_mul_f32 {p2(U[k])}, {p2(U[k])}, {p2(tmp+2*k)}' for k in range(4)]
        o += [f'v_cvt_pk_bf16_f32 v{out+k}, v{U[k]}, v{U[k]+1}' for k in range(4)]
        return raws(o) + [Item('vm', f'buffer_store_dwordx4 v[{out}:{out+3}], v{V_A}, s[4:7], {store} sc1', tag)]
    def block(b):
        o = []
        if b < 3:
            for m in range(4):
                o += swiglu([(2 * b, m), (2 * b + 1, m)], f's54 offen offset:{1024*m}', ('H', b, m))
            o += raws(f's_add_u32 s54, s54, {8*4096}')
        else:
            for h in range(2):
                o += swiglu([(6, 2 * h), (6, 2 * h + 1)], f's55 offen offset:{2048*h}', ('H', 3, 2 + h))
        return o
    def hflag(val, tag):
        return [Item('raw', f'v_mov_b32 v19, {val}'), Item('need', tag=[tag]),
                Item('vm', f'buffer_store_dword v19, v{VZ}, s[4:7], s75 offen sc1')]
    def run(items, vq=None, every=16):
        for n, it in enumerate(items):
            it.emit(st)
            if vq and n % every == every - 1: emit_vm(vq.pop(0))
    run(block(0))
    st.need([('ALL',)])
    R(check_far(allpoll, 'v_and_b32 v16, v16, v17\nv_and_b32 v18, v18, v19\nv_and_b32 v16, v16, v18\nv_cmp_ne_u32 vcc, 1, v16'))
    R(sp('b0'))
    LAM, LP = 20, 24
    SS, TA, TB, HH, TC, K1, K2 = 112, 116, 120, 124, 144, 148, 152
    def upair(pj, i): return (32 if i % 2 == 0 else 64) + pj * 16 + (i & ~1)
    R('\n'.join(unstash(0, LAM) + unstash(2, SS)))
    def scale(pj, i):
        Rr, I = 32 + pj * 16 + i, 64 + pj * 16 + i; s = SS + 2 * pj; ta, tb = TA + 2 * pj, TB + 2 * pj
        return [f'v_pk_mul_f32 {p2(ta)}, {p2(Rr)}, {p2(s)} op_sel_hi:[0,1]',
                f'v_pk_mul_f32 {p2(tb)}, {p2(Rr)}, {p2(s)} op_sel:[1,0]',
                f'v_pk_fma_f32 {p2(Rr)}, {p2(I)}, {p2(s)}, {p2(ta)} op_sel:[0,1,0] op_sel_hi:[0,0,1] neg_lo:[1,0,0]',
                f'v_pk_fma_f32 {p2(I)}, {p2(I)}, {p2(s)}, {p2(tb)} op_sel:[1,1,0] op_sel_hi:[1,0,1] neg_lo:[1,0,0]']
    def chain(pj):
        o = []
        for i in range(1, 16):
            o += cfma(HH + 2 * pj, LAM + 2 * pj, HH + 2 * pj if i > 1 else upair(pj, 0), upair(pj, i), TC + 2 * pj)
        return o
    scl = [sum((scale(pj, i) for i in range(0, 16, 2)), []) for pj in range(2)]
    ch = [chain(pj) for pj in range(2)]
    R('\n'.join(ilv(scl[0][:4], scl[1][:4]) + ilv(scl[0][4:], ch[0][:2], scl[1][4:], ch[1][:2])[:12] +
                ilv(scl[0][8:], ch[0][2:], scl[1][8:], ch[1][2:])))
    def cf2(d, x, y, c): return both(lambda pj: cfma(d + 2 * pj, x + 2 * pj, y + 2 * pj, c + 2 * pj))
    EA, EB = LP, TB
    R(f'v_mov_b64 {p2(EA)}, {p2(HH)}\nv_mov_b64 {p2(EA+2)}, {p2(HH+2)}')
    R('\n'.join(unstash(4, K1) + unstash(6, K2)))
    for c in range(4): R(f'v_permlane16_swap_b32 v{EA+c}, v{HH+c}')
    R('\n'.join(cf2(HH, K1, EA, HH)))
    R(f'''
    v_mov_b64 {p2(EB)}, {p2(HH)}
    v_mov_b64 {p2(EB+2)}, {p2(HH+2)}
    v_lshlrev_b32 v27, 4, v0
    s_lshl_b32 s65, s3, 8
    ''' .replace('v27', 'v18'))
    for c in range(4): R(f'v_permlane32_swap_b32 v{EB+c}, v{HH+c}')
    R(f'v_and_b32 v17, 0xf0, v18\nv_add_u32 v16, {WX_OFF}, v17\nv_add_u32 v15, s65, v16')
    R('\n'.join(cf2(HH, K2, EB, HH)))
    st.mem('lds', f'ds_write_b128 v15, v[{HH}:{HH+3}]')
    for c in range(4): R(f'v_cndmask_b32 v{EB+c}, 0, v{EB+c}, s[68:69]')
    R('\n'.join(cf2(EA, K1, EB, EA)))
    for c in range(4): R(f'v_cndmask_b32 v{EA+c}, v{EB+c}, v{EA+c}, s[66:67]')
    R('\n'.join(unstash(8, K1) + unstash(10, K2)))
    st.need([('B2', 3, 3)])
    st.drain('lds'); R('s_barrier')
    W = 128
    for w in range(4):
        st.mem('lds', f'ds_read_b128 v[{W+4*w}:{W+4*w+3}], v16 offset:{256*w}', ('W', w))
    R(f'''
    s_sub_u32 s65, 7, s56
    s_lshl_b32 s65, s65, 8
    v_add_u32 v17, s65, v17
    v_and_b32 v18, 0x300, v18
    v_lshl_add_u32 v18, v18, 3, v17
    ''')
    run(hflag(1, ('H', 0, 3)))
    for w in range(1, 4):
        st.need([('W', w)])
        R('\n'.join(cf2(W + 4 * w, K1, W + 4 * w - 4, W + 4 * w)))
    for c in range(4): R(f'v_and_b32 v{W+12+c}, -2, v{W+12+c}')
    st.mem('vm', f'buffer_store_dwordx4 v[{W+12}:{W+15}], v18, s[44:47], 0 offen sc1')
    for c in range(4):
        R(f'v_cndmask_b32 v{W+c}, 0, v{W+c}, s[16:17]\nv_cndmask_b32 v{W+4+c}, v{W+4+c}, v{W+8+c}, s[16:17]')
    for c in range(4): R(f'v_cndmask_b32 v{W+c}, v{W+c}, v{W+4+c}, s[18:19]')
    R('\n'.join(cf2(LP, K2, W, LP)))
    R(sp('scan1'))
    hpoll = 'buffer_load_dword v31, v30, s[4:7], s74 offen sc1'
    def hcheck(val): return check_far(hpoll, f'v_cmp_gt_u32 vcc, {val}, v31')
    b1 = block(1)
    bq = []
    for s_ in range(4, npre): bq += dmaB2(s_)
    run(b1[:len(b1) // 2], bq, every)
    st.mem('vm', hpoll, ('HP', 1))
    run(b1[len(b1) // 2:], bq, every)
    st.need([('HP', 1)])
    R(hcheck(1))
    R(sp('b1'))
    def a2dst(stage, k, m):
        if stage in (12, 13): return vr(32 + (stage - 12) * 32 + (k * 4 + m) * 4, 4)
        return aring(stage, k, m)
    R('s_mov_b32 s60, s73')
    aq = []
    for s_ in range(ad2): aq += ldA(s_, N2, a2dst, 'A2')
    aq += bq
    run(block(2), aq, every + 2)
    run(hflag(2, ('H', 1, 3)))
    run(block(3), aq, every + 2)
    while aq: emit_vm(aq.pop(0))
    R(f'''
    v_lshrrev_b32 v{T1}, 2, v0
    v_and_b32 v{T2}, 7, v{T1}
    v_lshlrev_b32 v{T1}, 8, v{T1}
    v_lshl_add_u32 v{T1}, v{T2}, 5, v{T1}
    v_and_b32 v{T2}, 3, v0
    v_lshl_add_u32 v{V_RF2}, v{T2}, 3, v{T1}
    ''')
    R('\n'.join(f'v_xor_b32 v{V_RF2+j}, {32*j}, v{V_RF2}' for j in range(1, 8)))

    T_ = N2 - tail
    seq = [(s_, j) for s_ in range(T_) for j in range(8)]
    seq += [(s_, j) for pc in (1, 2, 3, 0) for s_ in range(T_, N2) for j in (2 * pc, 2 * pc + 1)]
    G0 = 3 * 1000
    def rdB2(n):
        if n >= len(seq): return []
        stage, j = seq[n]; g = G0 + n
        b = (stage % 4) * 16384
        if stage >= NFF:
            hi = 2 * ((stage % 8) // 4)
            return [Item('lds', f'ds_read_b128 {bfr(g, k)}, v{V_RS2+hi+k} offset:{b + j*2048}', ('F', g, k)) for k in range(2)]
        return [Item('lds', f'ds_read_b64_tr_b16 {bfr(g, k, 2*q, 2)}, v{V_RF2+j} offset:{b + (32*k + 16*q)*256}',
                     ('F', g, k) if q else None) for k in range(2) for q in range(2)]
    for n in range(2):
        for it in rdB2(n): it.emit(st)
    R(sp('g2_go'))
    VACC = 96
    def accb(j, m): return VACC + (j * 4 + m) * 4
    def acc2(j, m): return vr(accb(j, m), 4)
    def mf2(j, m, af, bf, c):
        return f'{MFMA} {acc2(j,m)}, {af}, {bf}, {c}' if orient == 't' else f'{MFMA} {acc2(j,m)}, {bf}, {af}, {c}'
    def after(nm):
        t0 = [None]
        def f():
            if t0[0] is None: t0[0] = st.clock
            return st.clock >= t0[0] + nm
        return Item('gate', tag=f)
    AG, KC, PK = 224, 252, 224
    aggld = [f'buffer_load_dwordx4 v[{AG-4+4*i}:{AG-1+4*i}], v17, s[44:47], 0 offen offset:{256*i} sc1' for i in range(1, 8)]
    aggck = [f'v_or3_b32 v19, v{AG}, v{AG+1}, v{AG+2}'] + [f'v_or3_b32 v19, v19, v{r}, v{r+1}' for r in range(AG + 3, AG + 27, 2)]
    aggck += [f'v_or_b32 v19, v19, v{AG+27}', 'v_and_b32 v19, 1, v19']
    p2f = []
    for i, t in enumerate(aggld): p2f += [Item('vm', t, ('AG', i)), after(4)]
    p2f += raws(unstash(12, KC)) + [after(48), Item('need', tag=[('AG', 6)])] + raws(aggck)
    nlab[0] += 1; n_ = nlab[0]
    far.append(f'L_far{n_}:\ns_mov_b32 s71, {SPIN_MAX}\nL_fp{n_}:\n' + '\n'.join(aggld) +
               f'\ns_sub_u32 s71, s71, 1\ns_waitcnt vmcnt(0)\ns_cbranch_scc1 L_back{n_}\n' + '\n'.join(aggck) +
               f'\nv_cmp_ne_u32 vcc, 0, v19\ns_cbranch_vccnz L_fp{n_}\ns_branch L_back{n_}')
    p2f += [Item('raw', f'v_cmp_ne_u32 vcc, 0, v19\ns_cbranch_vccnz L_far{n_}\nL_back{n_}:')]
    def cs2(d, x, y): return both(lambda pj: cfma_s(d + 2 * pj, x + 2 * pj, y + 2 * pj))
    for i in range(6, 0, -1): p2f += raws(cs2(AG - 4 + 4 * i, KC, AG + 4 * i))
    p2f += raws(unstash(14, KC) + cs2(LP, KC, AG))
    def pass2(pj):
        o = []
        for i in range(16):
            o += cfma_s(upair(pj, i), LAM + 2 * pj, upair(pj, i - 1) if i else LP + 2 * pj)
            if i % 2 == 1:
                e, od = upair(pj, i - 1), upair(pj, i)
                o += [f'v_cvt_pk_bf16_f32 v{PK+pj*8+i//2}, v{e}, v{od}', f'v_cvt_pk_bf16_f32 v{PK+16+pj*8+i//2}, -v{e+1}, -v{od+1}']
        return o
    p2f += raws(both(pass2))
    p2f += raws(f'''
    s_lshl_b32 s65, s3, 13
    s_add_u32 s65, s65, {TRB}
    v_and_b32 v14, 15, v0
    v_mul_u32_u24 v14, 144, v14
    v_lshrrev_b32 v16, 4, v0
    v_lshl_add_u32 v14, v16, 5, v14
    v_add_u32 v14, s65, v14
    v_bfe_u32 v15, v0, 2, 2
    v_lshl_add_u32 v15, v16, 3, v15
    v_mul_u32_u24 v15, 144, v15
    v_and_b32 v16, 3, v0
    v_lshl_add_u32 v15, v16, 5, v15
    v_add_u32 v15, s65, v15
    ''')
    for comp in range(2):
        for pj in range(2):
            for h in range(2):
                r = PK + comp * 16 + pj * 8 + 4 * h
                p2f += [Item('lds', f'ds_write_b128 v14, v[{r}:{r+3}] offset:{pj*16*144 + 16*h}'), after(2)]
        for m in range(4):
            for q in range(2):
                r = 32 + (comp * 4 + m) * 4 + 2 * q
                p2f.append(Item('lds', f'ds_read_b64_tr_b16 v[{r}:{r+1}], v15 offset:{q*4*144 + m*8}', ('TR', comp, m, q)))
    p2f += [after(8), Item('need', tag=[('TR', 1, 3, 1)])]
    for comp in range(2):
        for m in range(4):
            r = 32 + (comp * 4 + m) * 4
            p2f += [Item('vm', f'buffer_store_dwordx4 v[{r}:{r+3}], v{V_A}, s[4:7], s80 offen offset:{1024*m} sc1', ('H', 4, comp * 4 + m)), after(4)]
        p2f += raws('s_add_u32 s80, s80, 8192')
    p2f += raws(f'''
    v_lshrrev_b32 v18, 4, v0
    v_lshrrev_b32 v19, 3, v0
    v_and_b32 v24, 7, v0
    v_xor_b32 v24, v24, v18
    v_lshlrev_b32 v19, 11, v19
    v_lshl_add_u32 v{V_S2}, v24, 4, v19
    v_xor_b32 v{V_S2+1}, 64, v{V_S2}
    v_add_u32 v{V_S2+2}, {2*15360}, v{V_S2}
    v_add_u32 v{V_S2+3}, {3*15360}, v{V_S2+1}
    v_add_u32 v{V_S2+1}, 15360, v{V_S2+1}
    v_bfe_u32 v19, v0, 1, 3
    v_xor_b32 v19, v19, v18
    v_and_b32 v24, 15, v0
    v_lshlrev_b32 v27, 1, v24
    v_lshlrev_b32 v24, 7, v24
    v_lshl_add_u32 v{V_RS2}, v19, 4, v24
    v_xor_b32 v{V_RS2+1}, 64, v{V_RS2}
    v_xor_b32 v{V_RS2+2}, 0x10000, v{V_RS2}
    v_xor_b32 v{V_RS2+3}, 0x10000, v{V_RS2+1}
    v_bfe_u32 v19, v0, 2, 2
    v_lshlrev_b32 v19, 4, v19
    v_and_b32 v24, 3, v0
    v_add_u32 v25, v19, v24
    v_bfe_u32 v19, v0, 3, 2
    v_lshl_add_u32 v26, v19, 9, v30
    s_lshl_b32 s54, s79, 6
    s_mul_i32 s81, s72, {XS}
    s_lshl_b32 s65, s79, 12
    s_add_u32 s81, s81, s65
    s_add_u32 s55, s81, {XC_OFF}
    s_add_u32 s81, s81, {XN_OFF}
    s_lshl_b32 s78, s56, 4
    s_add_u32 s78, s78, s3
    s_lshl_b32 s78, s78, 7
    s_add_u32 s78, s78, {HF_OFF}
    ''') + [after(40)] + hflag(4, ('H', 4, 7))
    extra = []
    for m in range(4):
        extra.append((None, f'buffer_load_dwordx4 {ar(4*m,4)}, v{V_A}, s[4:7], s55 offen offset:{1024*m} sc1', ('E', m), None))
        extra.append((None, f'buffer_load_dwordx4 {ar(16+4*m,4)}, v{V_A}, s[4:7], s81 offen offset:{1024*m} sc1', ('E', 4 + m), None))
    for j in range(2):
        extra.append((None, f'buffer_load_ushort v{224+j}, v27, s[48:51], s54 offen offset:{32*j}', ('E', 8 + j), None))
    DI, DD = 232, 240
    diag = [Item('need', tag=[('E', 9)])] + raws(f'''
    v_bfe_u32 v226, v0, 1, 3
    v_lshlrev_b32 v227, 2, v18
    v_sub_u32 v226, v227, v226
    v_and_b32 v227, 1, v0
    v_lshlrev_b32 v227, 4, v227
    v_lshlrev_b32 v224, v227, v224
    v_lshlrev_b32 v225, v227, v225
    v_mov_b32 v228, 0x3f80
    v_lshlrev_b32 v228, v227, v228
    ''')
    for j in range(2):
        diag += raws([f'v_cmp_eq_i32 s[{8+2*w}:{9+2*w}], {8*j - w}, v226' for w in range(4)])
        diag += raws([f'v_cndmask_b32 v{DI+4*j+w}, 0, v228, s[{8+2*w}:{9+2*w}]' for w in range(4)])
        diag += raws([f'v_cndmask_b32 v{DD+4*j+w}, 0, v{224+j}, s[{8+2*w}:{9+2*w}]' for w in range(4)])
    if orient == 't':
        diag += raws('v_lshlrev_b32 v19, 16, v18\nv_lshl_add_u32 v24, v27, 1, v19')
    else:
        diag += raws('v_lshlrev_b32 v19, 12, v25\nv_lshl_add_u32 v24, v18, 4, v19')
    diag += raws('s_lshl_b32 s54, s72, 18\ns_lshl_b32 s65, s79, 7\ns_add_u32 s54, s54, s65\nv_mov_b32 v19, 1')
    def publish(d):
        o = [after(3)] + raws([f's_xor_b32 s55, s76, {d << 3}', 's_lshl_b32 s55, s55, 12', f's_add_u32 s55, s55, {PART_OFF + (d << 22)}'])
        for k in range(4):
            q = 32 + ((d - 1) * 4 + k) * 4; b = accb(2 * d, 0) + 8 * k
            o += raws([f'v_cvt_pk_bf16_f32 v{q+i}, v{b+2*i}, v{b+2*i+1}' for i in range(4)])
            o.append(Item('vm', f'buffer_store_dwordx4 v[{q}:{q+3}], v{V_A}, s[4:7], s55 offen offset:{1024*k} sc1', ('PS', d, k)))
        return o
    def xflag(d):
        return raws([f's_xor_b32 s65, s77, {d << 9}']) + [Item('need', tag=[('PS', d, 3)]),
                Item('vm', f'buffer_store_dword v19, v{VZ}, s[4:7], s65 offen offset:{4*d} sc1')]
    checks = {4 - ad2: 2, 8 - ad2: 3, 14 - ad2: 4}
    vmq = []
    for s_ in range(npre, PD + 1): vmq += dmaB2(s_)
    switched = set(range(4)); started = set(); inited = set()
    for n, (stage, j) in enumerate(seq):
        g = G0 + n
        pre0 = []
        if stage not in started:
            started.add(stage)
            R(sp(f's2_{stage}'))
            if stage in checks:
                pre0 += [Item('need', tag=[('HP', checks[stage])]), Item('raw', hcheck(checks[stage]))]
            if stage + ad2 in (12, 13): assert not [x for x in sc.fill if x.kind == 'vm' and x.tag and x.tag[0] == 'H']
            vmq += ldA(stage + ad2, N2, a2dst, 'A2')
            if stage + 1 in checks: vmq.insert(0, (None, hpoll, ('HP', checks[stage + 1]), None))
            if stage == 1: sc.fill += hflag(3, ('H', 3, 3))
            if stage == p2_stage: sc.fill += p2f
            xcpoll = 'buffer_load_dword v31, v26, s[4:7], s78 offen sc1'
            if stage == 12: vmq.insert(0, (None, xcpoll, ('XCP',), None))
            if stage == 13: pre0 += [Item('need', tag=[('XCP',)]), Item('raw', check_far(xcpoll, 'v_cmp_gt_u32 vcc, 1, v31'))]
            if 13 <= stage < 17: vmq += [extra.pop(0) for _ in range(min(3, len(extra)))]
            if stage == 18: sc.fill += diag
        if n + 2 < len(seq):
            ns, nj = seq[n + 2]
            if nj == 0 and ns < T_ or (ns == T_ and ns not in started and nj == 2):
                last = ns if ns < T_ else N2 - 1
                pre0 += [Item('need', tag=[('B2', last, 3)]), Item('raw', 's_barrier')]
                if ns + PD == NFF: assert not sc.fill, len(sc.fill)
                if ns + PD >= npre: vmq += dmaB2(ns + PD)
            if ns < NFF and ns % 4 == 0 and ns > 0:
                pre0 += raws(f'v_xor_b32 v{V_RF2+nj}, 0x10000, v{V_RF2+nj}')
        if stage in (11, 12) and j == 5:
            b = 32 + (stage - 11) * 32
            sc.fill += [Item('need', tag=[('A2', stage + 1, 7)])] + raws([f'v_swap_b32 v{b+8*h+2+c}, v{b+8*h+4+c}' for h in range(4) for c in range(2)])
        if stage in (12, 13) and j == 0: assert not sc.fill
        mf = []
        for (m, k) in mk_order(n):
            c = acc2(j, m) if (j, m) in inited else '0'
            inited.add((j, m))
            mf.append((mf2(j, m, a2dst(stage, k, m), bfr(g, k), c), [('F', g, 1), ('A2', stage, 7)]))
        group(mf, rdB2(n + 2), vmq, (4, 6), pre0)
        if stage == N2 - 1 and j % 2 == 1 and j > 1:
            d = j // 2
            sc.fill += publish(d)
            if d == 3: sc.fill += xflag(1)
        if stamp and (stage, j) == (T_ - 1, 7): R(sp('tail'))
    assert not vmq and not extra
    for (dg, xb) in ((DI, 0), (DD, 16)):
        group([(mf2(j, m, ar(xb + 4 * m, 4), vr(dg + 4 * j, 4), acc2(j, m)), []) for j in range(2) for m in range(4)], [], [], ())
    sc.flush()
    R(sp('g2_end'))
    run(xflag(2))
    xpoll = f'buffer_load_dwordx4 v[248:251], v{V0_}, s[4:7], s77 offen sc1'
    st.mem('vm', xpoll, ('XP', 0))
    run(xflag(3))
    st.need([('XP', 0)])
    R(check_far(xpoll, 'v_and_b32 v248, v249, v250\nv_cmp_ne_u32 vcc, 1, v248'))
    R(sp('polled12'))
    R(f's_lshl_b32 s55, s76, 12\ns_add_u32 s55, s55, {PART_OFF}')
    RB = 128
    def rdpart(d):
        R(f's_add_u32 s55, s55, {1<<22}')
        for k in range(4):
            r = RB + ((d - 1) * 4 + k) * 4
            st.mem('vm', f'buffer_load_dwordx4 v[{r}:{r+3}], v{V_A}, s[4:7], s55 offen offset:{1024*k} sc1', ('R', d, k))
    def addpart(d, k):
        st.need([('R', d, k)])
        r = RB + ((d - 1) * 4 + k) * 4
        for i in range(4):
            R(f'v_lshlrev_b32 v{176+2*i}, 16, v{r+i}\nv_and_b32 v{177+2*i}, 0xffff0000, v{r+i}')
        for i in range(4):
            b = VACC + 8 * k + 2 * i
            R(f'v_pk_add_f32 {p2(b)}, {p2(b)}, {p2(176+2*i)}')
    rdpart(1); rdpart(2)
    R(check_far(xpoll, 'v_cmp_ne_u32 vcc, 1, v251'))
    rdpart(3)
    for d in (1, 2):
        for k in range(4): addpart(d, k)
    for k in (0, 2, 1, 3):
        addpart(3, k)
        if k >= 2:
            for m in (2 * (k - 2), 2 * (k - 2) + 1):
                if orient == 't':
                    for r in range(4):
                        for j in range(2):
                            st.mem('vm', f'buffer_store_dword v{accb(j,m)+r}, v24, s[36:39], s54 offen offset:{64*j} {ost}')
                        R('s_add_u32 s54, s54, 4096')
                else:
                    for j in range(2):
                        st.mem('vm', f'buffer_store_dwordx4 {acc2(j,m)}, v24, s[36:39], s54 offen offset:{64*j} {ost}')
                    R('s_add_u32 s54, s54, 16384')
    R(sp.finish())
    R('s_endpgm')
    for f in far: R(f)
    R('L_done:\ns_endpgm')
    a('\n'.join(st.out))
    hdr = '; Fused LayerNorm -> GEMM1 (B-projection + scan, gate/up + SwiGLU) -> GEMM2 (C-projection + down, split-K 4)\n'
    hdr += (f'; @launch kernel={NAME} grid=(256,1,1) block=(256,1,1) lds={LDS_BYTES}\n' if as_list
            else f'; @launch grid=(256,1,1) block=(256,1,1) lds={LDS_BYTES}\n')
    hdr += '.amdgcn_target "amdgcn-amd-amdhsa--gfx950"\n'
    gen.names = sp.names
    return hdr + a.text() + kernel_desc(NAME, 512, 256)

if __name__ == '__main__':
    kw = eval('dict(%s)' % (sys.argv[2] if len(sys.argv) > 2 else ''))
    open(sys.argv[1], 'w').write(gen(**kw))
```
